```python
import torch

def _softmax(x, axis=-1):
    return torch.softmax(x, dim=axis)
def _gelu(x):
    return torch.nn.functional.gelu(x, approximate="tanh")
def _silu(x):
    return torch.nn.functional.silu(x)
def _sigmoid(x):
    return torch.sigmoid(x)
def _layernorm(x, axis=-1, eps=1e-5):
    m = x.mean(dim=axis, keepdim=True)
    v = x.var(dim=axis, keepdim=True, unbiased=False)
    return (x - m) / torch.sqrt(v + eps)
def _scatter_add(tgt, idx, src, axis=0):
    return tgt.clone().index_add_(axis, idx, src)
def _segment_sum(src, seg, n):
    out = torch.zeros((n,) + src.shape[1:], dtype=src.dtype)
    return out.index_add_(0, seg, src)
def _pad(x, pw):
    flat = tuple(v for pair in reversed(pw) for v in pair)
    return torch.nn.functional.pad(x, flat)

kernel_name = 'standalone__sliding_block_cached__decode'

def setup_inputs():

    _w = (lambda a: (lambda t: t.to(torch.bfloat16) if t.is_floating_point() else t)(torch.as_tensor(a)))
    B, Sq, D = 1, 1, 640
    Hq, Hkv, Sk, Dh = 32, 32, 16384, 128
    assert Hq % Hkv == 0, (Hq, Hkv)
    return {
        "x": _w((lambda *s: torch.randn(*s, dtype=torch.bfloat16) * 0.8)(B, Sq, D)),
        "k_cache": _w((lambda *s: torch.randn(*s, dtype=torch.bfloat16) * 0.8)(B, Hkv, Sk, Dh)),
        "v_cache": _w((lambda *s: torch.randn(*s, dtype=torch.bfloat16) * 0.05)(B, Hkv, Sk, Dh)),
        "wq": _w((lambda *s: torch.randn(*s, dtype=torch.bfloat16) * 0.8)(D, Hq * Dh) * (D ** -0.5)),
        "wo": _w((lambda *s: torch.randn(*s, dtype=torch.bfloat16) * 0.05)(Hq * Dh, D) * ((Hq * Dh) ** -0.5)),
    }

def reference(x, k_cache, v_cache, wq, wo):
    B, Sq, D = x.shape
    Hq, Dh = 32, 128
    Hkv, Sk = k_cache.shape[1], k_cache.shape[2]
    W = min(4096, max(256, Sk // 4))
    rep = Hq // Hkv
    q = (lambda x, *d: x.permute(*d))((x @ wq).reshape(B, Sq, Hq, Dh), 0, 2, 1, 3)
    k = (lambda x, n, axis: torch.repeat_interleave(x, n, dim=axis))(k_cache[:, :, Sk - W:, :], rep, axis=1)
    v = (lambda x, n, axis: torch.repeat_interleave(x, n, dim=axis))(v_cache[:, :, Sk - W:, :], rep, axis=1)
    scores = torch.einsum("bhqd,bhkd->bhqk", q, k) * (Dh ** -0.5)
    p = _softmax(scores, axis=-1)
    o = torch.einsum("bhqk,bhkd->bhqd", p, v)
    return (lambda x, *d: x.permute(*d))(o, 0, 2, 1, 3).reshape(B, Sq, Hq * Dh) @ wo
```

```python
import sys

NT_KV = True
SPIN_LIMIT = 1 << 20

out = []
def e(s=""):
    out.append("    " + s if s and not s.endswith(":") else s)

HEADER = """; Kernarg layout for this problem (64 bytes, ptrs only, base s[0:1]):
; @launch grid=(256,1,1) block=(512,1,1) lds=16384
.amdgcn_target "amdgcn-amd-amdhsa--gfx950"
.text
.globl standalone__sliding_block_cached__decode_kernel
.p2align 8
.type standalone__sliding_block_cached__decode_kernel,@function
standalone__sliding_block_cached__decode_kernel:
"""

FOOTER = """.section .rodata,"a"
.p2align 6
.amdhsa_kernel standalone__sliding_block_cached__decode_kernel
  .amdhsa_next_free_vgpr 256
  .amdhsa_next_free_sgpr 96
  .amdhsa_accum_offset 256
  .amdhsa_group_segment_fixed_size 0
  .amdhsa_kernarg_size 64
  .amdhsa_user_sgpr_count 2
  .amdhsa_user_sgpr_kernarg_segment_ptr 1
  .amdhsa_system_sgpr_workgroup_id_x 1
.end_amdhsa_kernel
"""

sK, sV, sWQ, sWO, sX, sWS, sOUT, sDBG = 20, 24, 28, 32, 36, 40, 44, 48
sH, sS, sW = 52, 53, 54
sT0, sT1, sT2 = 55, 56, 57
sK4, sK8, sK12 = 58, 59, 60
sSELLO, sSELHI = 61, 62
sOB0, sOB1 = 63, 64
sMYOB, sMYYB = 65, 66
sSCALE = 67
sSPIN = 68
sYB = 69
sEX = 70

def srd(r): return f"s[{r}:{r+3}]"

vTID, vLANE, vKV, vWQ, vXO, vWOO, vLW, vLR, vQP = 0, 1, 2, 3, 4, 5, 6, 7, 8
vZERO = 9
vX = 10
vW = 20
vVV = 20
vWO = 84
vK = 100
vA = 164
vQ = 172
vS = 176
vT = 192
vWOF = 200
vCH, vG, vWG = 232, 233, 234
vL16 = 235
vOA = 236
vM = 237
vLS = 238
vCNT = 239
vYA = 240

LDS_QPART, LDS_QPK, LDS_MAX, LDS_LS, LDS_OPART, LDS_YPART = 0, 4096, 6144, 6176, 8192, 12288
YBOX = 262144

def vr(b, n): return f"v[{b}:{b+n-1}]"

def swap_reduce(a):
    e("s_nop 1")
    for j in range(4):
        e(f"v_permlane32_swap_b32 v{a+j}, v{a+j+4}")
    for j in range(4):
        e(f"v_add_f32 v{a+j}, v{a+j}, v{a+j+4}")
    e("s_nop 1")
    for j in range(2):
        e(f"v_permlane16_swap_b32 v{a+j}, v{a+j+2}")
    for j in range(2):
        e(f"v_add_f32 v{a+j}, v{a+j}, v{a+j+2}")

def lds_sum8(dst, tmp, base):
    for w in range(8):
        e(f"ds_read_b64 {vr(tmp+2*w,2)}, v{vLR} offset:{base + w*512}")
    e("s_waitcnt lgkmcnt(0)")
    for c in range(2):
        e(f"v_add_f32 v{tmp+c}, v{tmp+c}, v{tmp+2+c}")
        e(f"v_add_f32 v{tmp+4+c}, v{tmp+4+c}, v{tmp+6+c}")
        e(f"v_add_f32 v{tmp+8+c}, v{tmp+8+c}, v{tmp+10+c}")
        e(f"v_add_f32 v{tmp+12+c}, v{tmp+12+c}, v{tmp+14+c}")
    for c in range(2):
        e(f"v_add_f32 v{tmp+c}, v{tmp+c}, v{tmp+4+c}")
        e(f"v_add_f32 v{tmp+8+c}, v{tmp+8+c}, v{tmp+12+c}")
    for c in range(2):
        e(f"v_add_f32 v{dst+c}, v{tmp+c}, v{tmp+8+c}")

e("s_cmp_ge_u32 s2, 256")
e("s_cbranch_scc1 L_end")
e("s_load_dwordx16 s[4:19], s[0:1], 0")
e(f"s_and_b32 s{sH}, s2, 7")
e(f"s_lshl_b32 s{sH}, s{sH}, 2")
e(f"s_bfe_u32 s{sS}, s2, 0x20003")
e(f"s_add_u32 s{sH}, s{sH}, s{sS}")
e(f"s_lshr_b32 s{sS}, s2, 5")
e(f"v_and_b32 v{vLANE}, 63, v0")
e(f"v_lshrrev_b32 v{vT}, 6, v0")
e(f"v_and_b32 v{vCH}, 15, v0")
e(f"v_readfirstlane_b32 s{sW}, v{vT}")
e(f"v_bfe_u32 v{vG}, v0, 4, 2")
e(f"v_lshrrev_b32 v{vWG}, 4, v0")
e(f"v_lshlrev_b32 v{vL16}, 4, v{vLANE}")
e(f"v_lshl_add_u32 v{vKV}, v{vT}, 14, v{vL16}")
e(f"v_mul_u32_u24 v{vWQ}, 163840, v{vWG}")
e(f"v_lshl_add_u32 v{vWQ}, v{vCH}, 4, v{vWQ}")
e(f"v_mul_u32_u24 v{vXO}, 40, v{vWG}")
e(f"v_mul_u32_u24 v{vWOO}, 5120, v{vWG}")
e(f"v_lshl_add_u32 v{vWOO}, v{vCH}, 4, v{vWOO}")
e(f"v_mov_b32 v{vT+1}, 0x7fff0000")
e(f"v_cmp_gt_u32 vcc, 10, v{vCH}")
e(f"v_mov_b32 v{vZERO}, 0")
e(f"v_lshlrev_b32 v{vT+2}, 2, v{vCH}")
e(f"v_cndmask_b32 v{vWOO}, v{vT+1}, v{vWOO}, vcc")
e(f"v_add_u32 v{vT+2}, v{vT+2}, v{vG}")
e(f"v_lshlrev_b32 v{vLW}, 3, v{vT+2}")
e(f"v_lshl_add_u32 v{vLW}, v{vT}, 9, v{vLW}")
e(f"v_lshlrev_b32 v{vLR}, 3, v{vLANE}")
e(f"v_lshlrev_b32 v{vOA}, 4, v{vWG}")
e(f"s_mov_b32 s{sK4}, 4096")
e(f"s_mov_b32 s{sK8}, 8192")
e(f"s_mov_b32 s{sK12}, 12288")
e(f"s_mov_b32 s{sSELLO}, 0x05040100")
e(f"s_mov_b32 s{sSELHI}, 0x07060302")
e(f"s_mov_b32 s{sSCALE}, 0x3e0293ee")
e(f"s_lshl_b32 s{sT0}, s{sH}, 22")
e(f"s_lshl_b32 s{sT1}, s{sS}, 17")
e(f"s_add_u32 s{sT0}, s{sT0}, s{sT1}")
e(f"s_add_u32 s{sT0}, s{sT0}, 0x300000")
e(f"s_lshl_b32 s{sOB0}, s{sH}, 13")
e(f"s_add_u32 s{sOB1}, s{sOB0}, 4096")
e(f"s_lshl_b32 s{sT1}, s{sS}, 10")
e(f"s_add_u32 s{sMYOB}, s{sOB0}, s{sT1}")
e(f"s_lshl_b32 s{sYB}, s{sS}, 15")
e(f"s_add_u32 s{sYB}, s{sYB}, {YBOX}")
e(f"s_lshl_b32 s{sT1}, s{sH}, 10")
e(f"s_add_u32 s{sMYYB}, s{sYB}, s{sT1}")
for r in (sK, sV, sWQ, sWO, sX, sWS, sOUT, sDBG):
    e(f"s_mov_b32 s{r+3}, 0x00020000")
e(f"s_mov_b32 s{sK+2}, 131072")
e(f"s_mov_b32 s{sV+2}, 131072")
e(f"s_mov_b32 s{sX+2}, 1280")
e(f"s_mov_b32 s{sWS+2}, {2*YBOX}")
e(f"s_mov_b32 s{sOUT+2}, 1280")
e(f"s_mov_b32 s{sDBG+2}, 256")
e(f"s_lshl_b32 s{sT1}, s{sH}, 8")
e(f"s_sub_u32 s{sWQ+2}, {640*8192}, s{sT1}")
e(f"s_mul_i32 s{sT2}, s{sH}, 163840")
e(f"s_mul_i32 s{sSPIN}, s{sS}, 160")
e(f"s_add_u32 s{sT2}, s{sT2}, s{sSPIN}")
e(f"s_sub_u32 s{sWO+2}, {4096*1280}, s{sT2}")
e("s_waitcnt lgkmcnt(0)")
e(f"s_add_u32 s{sK}, s6, s{sT0}")
e(f"s_addc_u32 s{sK+1}, s7, 0")
e(f"s_add_u32 s{sV}, s8, s{sT0}")
e(f"s_addc_u32 s{sV+1}, s9, 0")
e(f"s_add_u32 s{sWQ}, s10, s{sT1}")
e(f"s_addc_u32 s{sWQ+1}, s11, 0")
e(f"s_add_u32 s{sWO}, s12, s{sT2}")
e(f"s_addc_u32 s{sWO+1}, s13, 0")
e(f"s_mov_b32 s{sX}, s4")
e(f"s_mov_b32 s{sX+1}, s5")
e(f"s_mov_b32 s{sWS}, s18")
e(f"s_mov_b32 s{sWS+1}, s19")
e(f"s_mov_b32 s{sOUT}, s14")
e(f"s_mov_b32 s{sOUT+1}, s15")
e(f"s_mov_b32 s{sDBG}, s16")
e(f"s_mov_b32 s{sDBG+1}, s17")

e(f"s_cmp_lg_u32 s{sW}, 0")
e("s_cbranch_scc1 L_noclear")
for j in range(4):
    e(f"v_mov_b32 v{vWOF+j}, -1")
e(f"buffer_store_dwordx4 {vr(vWOF,4)}, v{vL16}, {srd(sWS)}, s{sMYOB} offen sc1")
e(f"buffer_store_dwordx4 {vr(vWOF,4)}, v{vL16}, {srd(sWS)}, s{sMYYB} offen sc1")
e(f"v_mov_b32 v{vT+3}, 1")
e("s_waitcnt vmcnt(0)")
e(f"s_mov_b64 s[{sEX}:{sEX+1}], exec")
e("s_mov_b64 exec, 1")
e(f"buffer_atomic_add v{vT+3}, v{vZERO}, {srd(sDBG)}, 0 offen")
e(f"s_mov_b64 exec, s[{sEX}:{sEX+1}]")
e("L_noclear:")

nt = " nt" if NT_KV else ""
ops = []
e(f"buffer_load_dwordx4 {vr(vX,4)}, v{vXO}, {srd(sX)}, 0 offen")
e(f"buffer_load_dwordx4 {vr(vX+4,4)}, v{vXO}, {srd(sX)}, 0 offen offset:16")
e(f"buffer_load_dwordx2 {vr(vX+8,2)}, v{vXO}, {srd(sX)}, 0 offen offset:32")
ops += ["x0", "x1", "x2"]
e(f"s_mov_b32 s{sT0}, 0")
soffs = ["0", f"s{sK4}", f"s{sK8}", f"s{sK12}"]
for i in range(20):
    e(f"buffer_load_dwordx4 {vr(vW+4*i,4)}, v{vWQ}, {srd(sWQ)}, s{sT0} offen")
    ops.append(f"W{i}")
    if i < 19:
        e(f"s_add_u32 s{sT0}, s{sT0}, 8192")
    if i < 16:
        e(f"buffer_load_dwordx4 {vr(vK+4*i,4)}, v{vKV}, {srd(sK)}, {soffs[i//4]} offen offset:{(i%4)*1024}{nt}")
        ops.append(f"K{i}")

def wait_for(name):
    n = len(ops) - 1 - ops.index(name)
    e(f"s_waitcnt vmcnt({n})")

for j in range(8):
    e(f"v_mov_b32 v{vA+j}, 0")
for j in range(10):
    wait_for(f"W{2*j+1}")
    A, B = vW + 8*j, vW + 8*j + 4
    for d in range(4):
        t0, t1 = vT + (2*d) % 8, vT + (2*d+1) % 8
        e(f"v_perm_b32 v{t0}, v{B+d}, v{A+d}, s{sSELLO}")
        e(f"v_perm_b32 v{t1}, v{B+d}, v{A+d}, s{sSELHI}")
    for d in range(4):
        t0, t1 = vT + (2*d) % 8, vT + (2*d+1) % 8
        e(f"v_dot2c_f32_bf16 v{vA+2*d}, v{t0}, v{vX+j}")
        e(f"v_dot2c_f32_bf16 v{vA+2*d+1}, v{t1}, v{vX+j}")

for i in range(16):
    e(f"buffer_load_dwordx4 {vr(vVV+4*i,4)}, v{vKV}, {srd(sV)}, {soffs[i//4]} offen offset:{(i%4)*1024}{nt}")
    ops.append(f"V{i}")
for i in range(4):
    e(f"buffer_load_dwordx4 {vr(vWO+4*i,4)}, v{vWOO}, {srd(sWO)}, 0 offen offset:{i*1280}")
    ops.append(f"O{i}")
e(f"buffer_load_dword v{vCNT}, v{vZERO}, {srd(sDBG)}, 0 offen sc1")
ops.append("CNT")

swap_reduce(vA)
e(f"ds_write_b64 v{vLW}, {vr(vA,2)} offset:{LDS_QPART}")
e("s_waitcnt lgkmcnt(0)")
e("s_barrier")
lds_sum8(vA, vS, LDS_QPART)
e(f"v_cvt_pk_bf16_f32 v{vA}, v{vA}, v{vA+1}")
e(f"s_lshl_b32 s{sT0}, s{sW}, 8")
e(f"v_lshl_add_u32 v{vQP}, v{vLANE}, 2, s{sT0}")
e(f"ds_write_b32 v{vQP}, v{vA} offset:{LDS_QPK}")
e(f"v_lshl_add_u32 v{vQP}, v{vCH}, 4, s{sT0}")
e("s_waitcnt lgkmcnt(0)")
e(f"ds_read_b128 {vr(vQ,4)}, v{vQP} offset:{LDS_QPK}")
e("s_waitcnt lgkmcnt(0)")

for i0 in range(0, 16, 4):
    wait_for(f"K{i0+3}")
    for d in range(4):
        for i in range(i0, i0+4):
            c = "0" if d == 0 else f"v{vS+i}"
            e(f"v_dot2_f32_bf16 v{vS+i}, v{vK+4*i+d}, v{vQ+d}, {c}")
    for r in (8, 4, 2, 1):
        for i in range(i0, i0+4):
            e(f"v_add_f32_dpp v{vS+i}, v{vS+i}, v{vS+i} row_ror:{r} row_mask:0xf bank_mask:0xf")

e(f"v_max3_f32 v{vM}, v{vS}, v{vS+1}, v{vS+2}")
for i in range(3, 15, 2):
    e(f"v_max3_f32 v{vM}, v{vM}, v{vS+i}, v{vS+i+1}")
e(f"v_max_f32 v{vM}, v{vM}, v{vS+15}")
e(f"v_mov_b32 v{vT}, v{vM}")
e("s_nop 1")
e(f"v_permlane32_swap_b32 v{vM}, v{vT}")
e(f"v_max_f32 v{vM}, v{vM}, v{vT}")
e(f"v_mov_b32 v{vT}, v{vM}")
e("s_nop 1")
e(f"v_permlane16_swap_b32 v{vM}, v{vT}")
e(f"v_max_f32 v{vM}, v{vM}, v{vT}")
e(f"s_lshl_b32 s{sT0}, s{sW}, 2")
e(f"v_mov_b32 v{vT+1}, s{sT0}")
e(f"ds_write_b32 v{vT+1}, v{vM} offset:{LDS_MAX}")
e("s_waitcnt lgkmcnt(0)")
e("s_barrier")
e(f"ds_read_b128 {vr(vT,4)}, v{vZERO} offset:{LDS_MAX}")
e(f"ds_read_b128 {vr(vT+4,4)}, v{vZERO} offset:{LDS_MAX+16}")
e("s_waitcnt lgkmcnt(0)")
e(f"v_max3_f32 v{vM}, v{vT}, v{vT+1}, v{vT+2}")
e(f"v_max3_f32 v{vM}, v{vM}, v{vT+3}, v{vT+4}")
e(f"v_max3_f32 v{vM}, v{vM}, v{vT+5}, v{vT+6}")
e(f"v_max_f32 v{vM}, v{vM}, v{vT+7}")
e(f"v_mul_f32 v{vM}, s{sSCALE}, v{vM}")
for i in range(16):
    e(f"v_fma_f32 v{vS+i}, v{vS+i}, s{sSCALE}, -v{vM}")
for i in range(16):
    e(f"v_exp_f32 v{vS+i}, v{vS+i}")
e("s_nop 0")
e(f"v_add_f32 v{vLS}, v{vS}, v{vS+1}")
for i in range(2, 16):
    e(f"v_add_f32 v{vLS}, v{vLS}, v{vS+i}")
e(f"v_mov_b32 v{vT}, v{vLS}")
e("s_nop 1")
e(f"v_permlane32_swap_b32 v{vLS}, v{vT}")
e(f"v_add_f32 v{vLS}, v{vLS}, v{vT}")
e(f"v_mov_b32 v{vT}, v{vLS}")
e("s_nop 1")
e(f"v_permlane16_swap_b32 v{vLS}, v{vT}")
e(f"v_add_f32 v{vLS}, v{vLS}, v{vT}")
e(f"v_mov_b32 v{vT+1}, s{sT0}")
e(f"ds_write_b32 v{vT+1}, v{vLS} offset:{LDS_LS}")

for j in range(8):
    e(f"v_mov_b32 v{vA+j}, 0")
for i in range(16):
    wait_for(f"V{i}")
    b = vVV + 4*i
    for d in range(4):
        e(f"v_lshlrev_b32 v{vT+2*d}, 16, v{b+d}")
        e(f"v_and_b32 v{vT+2*d+1}, 0xffff0000, v{b+d}")
    for d in range(8):
        e(f"v_fmac_f32 v{vA+d}, v{vT+d}, v{vS+i}")
swap_reduce(vA)
e(f"ds_write_b64 v{vLW}, {vr(vA,2)} offset:{LDS_OPART}")
e("s_waitcnt vmcnt(0)")
for i in range(4):
    for d in range(4):
        e(f"v_lshlrev_b32 v{vWOF+8*i+2*d}, 16, v{vWO+4*i+d}")
        e(f"v_and_b32 v{vWOF+8*i+2*d+1}, 0xffff0000, v{vWO+4*i+d}")
e(f"s_mov_b32 s{sSPIN}, 0")
e("L_ready:")
e(f"v_readfirstlane_b32 s{sT1}, v{vCNT}")
e("s_nop 3")
e(f"s_cmp_ge_u32 s{sT1}, 256")
e("s_cbranch_scc1 L_ready_ok")
e(f"s_add_u32 s{sSPIN}, s{sSPIN}, 1")
e(f"s_cmp_ge_u32 s{sSPIN}, {SPIN_LIMIT}")
e("s_cbranch_scc1 L_ready_ok")
e("s_sleep 2")
e(f"buffer_load_dword v{vCNT}, v{vZERO}, {srd(sDBG)}, 0 offen sc1")
e("s_waitcnt vmcnt(0)")
e("s_branch L_ready")
e("L_ready_ok:")
e("s_waitcnt lgkmcnt(0)")
e("s_barrier")
e(f"s_cmp_lg_u32 s{sW}, 0")
e("s_cbranch_scc1 L_nopub1")
e(f"ds_read_b128 {vr(vT,4)}, v{vZERO} offset:{LDS_LS}")
e(f"ds_read_b128 {vr(vT+4,4)}, v{vZERO} offset:{LDS_LS+16}")
lds_sum8(vA, vS, LDS_OPART)
e(f"v_min_u32 v{vA}, -2, v{vA}")
e(f"v_min_u32 v{vA+1}, -2, v{vA+1}")
e(f"buffer_store_dwordx2 {vr(vA,2)}, v{vLR}, {srd(sWS)}, s{sMYOB} offen sc1")
for j in range(1, 8):
    e(f"v_add_f32 v{vT}, v{vT}, v{vT+j}")
e(f"v_min_u32 v{vA+2}, -2, v{vM}")
e(f"v_min_u32 v{vA+3}, -2, v{vT}")
e(f"buffer_store_dwordx2 {vr(vA+2,2)}, v{vZERO}, {srd(sWS)}, s{sMYOB} offen offset:512 sc1")
e("L_nopub1:")

vO1 = vK
vML = vK + 32
e(f"s_mov_b32 s{sSPIN}, 0")
e("L_poll1:")
for s in range(8):
    so = f"s{sOB0}" if s < 4 else f"s{sOB1}"
    e(f"buffer_load_dwordx4 {vr(vO1+4*s,4)}, v{vOA}, {srd(sWS)}, {so} offen offset:{(s%4)*1024} sc1")
for s in range(8):
    so = f"s{sOB0}" if s < 4 else f"s{sOB1}"
    e(f"buffer_load_dwordx2 {vr(vML+2*s,2)}, v{vZERO}, {srd(sWS)}, {so} offen offset:{(s%4)*1024+512} sc1")
e("s_waitcnt vmcnt(0)")
e(f"v_max3_u32 v{vT}, v{vO1}, v{vO1+1}, v{vO1+2}")
for i in range(3, 47, 2):
    e(f"v_max3_u32 v{vT}, v{vT}, v{vO1+i}, v{vO1+i+1}")
e(f"v_max_u32 v{vT}, v{vT}, v{vO1+47}")
e(f"v_cmp_eq_u32 vcc, -1, v{vT}")
e(f"s_add_u32 s{sSPIN}, s{sSPIN}, 1")
e(f"s_cmp_ge_u32 s{sSPIN}, {SPIN_LIMIT}")
e("s_cbranch_scc1 L_poll1_done")
e("s_nop 1")
e("s_cbranch_vccnz L_poll1")
e("L_poll1_done:")
e(f"v_max3_f32 v{vM}, v{vML}, v{vML+2}, v{vML+4}")
e(f"v_max3_f32 v{vM}, v{vM}, v{vML+6}, v{vML+8}")
e(f"v_max3_f32 v{vM}, v{vM}, v{vML+10}, v{vML+12}")
e(f"v_max_f32 v{vM}, v{vM}, v{vML+14}")
for s in range(8):
    e(f"v_sub_f32 v{vML+2*s}, v{vML+2*s}, v{vM}")
for s in range(8):
    e(f"v_exp_f32 v{vML+2*s}, v{vML+2*s}")
e("s_nop 0")
e(f"v_mul_f32 v{vLS}, v{vML}, v{vML+1}")
for s in range(1, 8):
    e(f"v_fmac_f32 v{vLS}, v{vML+2*s}, v{vML+2*s+1}")
e(f"v_rcp_f32 v{vLS}, v{vLS}")
for r in range(4):
    e(f"v_mul_f32 v{vT+r}, v{vML}, v{vO1+r}")
for s in range(1, 8):
    for r in range(4):
        e(f"v_fmac_f32 v{vT+r}, v{vML+2*s}, v{vO1+4*s+r}")
for r in range(4):
    e(f"v_mul_f32 v{vT+r}, v{vLS}, v{vT+r}")
for c in range(8):
    e(f"v_mul_f32 v{vA+c}, v{vT}, v{vWOF+c}")
for r in range(1, 4):
    for c in range(8):
        e(f"v_fmac_f32 v{vA+c}, v{vT+r}, v{vWOF+8*r+c}")
swap_reduce(vA)
e(f"ds_write_b64 v{vLW}, {vr(vA,2)} offset:{LDS_YPART}")
e("s_waitcnt lgkmcnt(0)")
e("s_barrier")
e(f"s_cmp_lg_u32 s{sW}, 0")
e("s_cbranch_scc1 L_nopub2")
lds_sum8(vA, vS, LDS_YPART)
e(f"v_min_u32 v{vA}, -2, v{vA}")
e(f"v_min_u32 v{vA+1}, -2, v{vA+1}")
e(f"buffer_store_dwordx2 {vr(vA,2)}, v{vLR}, {srd(sWS)}, s{sMYYB} offen sc1")
e("L_nopub2:")

e(f"s_lshl_b32 s{sT0}, s{sS}, 2")
e(f"s_cmp_lg_u32 s{sT0}, s{sH}")
e("s_cbranch_scc1 L_end")
e(f"s_cmp_ge_u32 s{sW}, 5")
e("s_cbranch_scc1 L_end")
e(f"v_lshrrev_b32 v{vT}, 2, v{vLANE}")
e(f"v_and_b32 v{vT+1}, 3, v{vLANE}")
e(f"v_lshlrev_b32 v{vYA}, 10, v{vT}")
e(f"v_lshl_add_u32 v{vYA}, v{vT+1}, 4, v{vYA}")
e(f"s_lshl_b32 s{sT0}, s{sW}, 6")
e(f"s_add_u32 s{sT0}, s{sT0}, s{sYB}")
e(f"s_add_u32 s{sT1}, s{sT0}, 16384")
e(f"s_mov_b32 s{sSPIN}, 0")
e("L_poll2:")
e(f"buffer_load_dwordx4 {vr(vO1,4)}, v{vYA}, {srd(sWS)}, s{sT0} offen sc1")
e(f"buffer_load_dwordx4 {vr(vO1+4,4)}, v{vYA}, {srd(sWS)}, s{sT1} offen sc1")
e("s_waitcnt vmcnt(0)")
e(f"v_max3_u32 v{vT}, v{vO1}, v{vO1+1}, v{vO1+2}")
e(f"v_max3_u32 v{vT}, v{vT}, v{vO1+3}, v{vO1+4}")
e(f"v_max3_u32 v{vT}, v{vT}, v{vO1+5}, v{vO1+6}")
e(f"v_max_u32 v{vT}, v{vT}, v{vO1+7}")
e(f"v_cmp_eq_u32 vcc, -1, v{vT}")
e(f"s_add_u32 s{sSPIN}, s{sSPIN}, 1")
e(f"s_cmp_ge_u32 s{sSPIN}, {SPIN_LIMIT}")
e("s_cbranch_scc1 L_poll2_done")
e("s_nop 1")
e("s_cbranch_vccnz L_poll2")
e("L_poll2_done:")
for c in range(4):
    e(f"v_add_f32 v{vA+c}, v{vO1+c}, v{vO1+4+c}")
e("s_nop 1")
for r in (4, 8):
    for c in range(4):
        e(f"v_add_f32_dpp v{vA+c}, v{vA+c}, v{vA+c} row_ror:{r} row_mask:0xf bank_mask:0xf")
    e("s_nop 1")
for c in range(4):
    e(f"v_mov_b32 v{vA+4+c}, v{vA+c}")
e("s_nop 1")
for c in range(4):
    e(f"v_permlane32_swap_b32 v{vA+c}, v{vA+4+c}")
for c in range(4):
    e(f"v_add_f32 v{vA+c}, v{vA+c}, v{vA+4+c}")
for c in range(4):
    e(f"v_mov_b32 v{vA+4+c}, v{vA+c}")
e("s_nop 1")
for c in range(4):
    e(f"v_permlane16_swap_b32 v{vA+c}, v{vA+4+c}")
for c in range(4):
    e(f"v_add_f32 v{vA+c}, v{vA+c}, v{vA+4+c}")
e(f"v_cvt_pk_bf16_f32 v{vA}, v{vA}, v{vA+1}")
e(f"v_cvt_pk_bf16_f32 v{vA+1}, v{vA+2}, v{vA+3}")
e(f"s_mul_i32 s{sT0}, s{sS}, 160")
e(f"s_lshl_b32 s{sT1}, s{sW}, 5")
e(f"s_add_u32 s{sT0}, s{sT0}, s{sT1}")
e(f"v_lshlrev_b32 v{vT+1}, 3, v{vT+1}")
e("s_mov_b64 exec, 15")
e(f"buffer_store_dwordx2 {vr(vA,2)}, v{vT+1}, {srd(sOUT)}, s{sT0} offen")
e("L_end:")
e("s_endpgm")

path = sys.argv[1] if len(sys.argv) > 1 else "standalone__sliding_block_cached__decode.s"
open(path, "w").write(HEADER + "\n".join(out) + "\n" + FOOTER)
print("wrote", path, len(out), "lines")
```

```python
import sys, os

STAMPS = int(os.environ.get("STAMPS", "0"))
EARLY = int(os.environ.get("EARLY", "0"))
DEPTH = int(os.environ.get("DEPTH", "99"))
NSTAMP = 12
SPIN_LIMIT = 1 << 20

out = []
def e(s=""):
    out.append("    " + s if s and not s.endswith(":") else s)
def stamp(i):
    if STAMPS:
        e(f"s_memrealtime s[{72+2*i}:{73+2*i}]")

HEADER = """; Kernarg layout for this problem (64 bytes, ptrs only, base s[0:1]):
; @launch grid=(256,1,1) block=(1024,1,1) lds=32768
.amdgcn_target "amdgcn-amd-amdhsa--gfx950"
.text
.globl standalone__sliding_block_cached__decode_kernel
.p2align 8
.type standalone__sliding_block_cached__decode_kernel,@function
standalone__sliding_block_cached__decode_kernel:
"""
FOOTER = """.section .rodata,"a"
.p2align 6
.amdhsa_kernel standalone__sliding_block_cached__decode_kernel
  .amdhsa_next_free_vgpr 128
  .amdhsa_next_free_sgpr 96
  .amdhsa_accum_offset 128
  .amdhsa_group_segment_fixed_size 0
  .amdhsa_kernarg_size 64
  .amdhsa_user_sgpr_count 2
  .amdhsa_user_sgpr_kernarg_segment_ptr 1
  .amdhsa_system_sgpr_workgroup_id_x 1
.end_amdhsa_kernel
"""

sK, sV, sWQ, sWO, sWS, sOUT, sDBG = 20, 24, 28, 32, 40, 44, 48
sH, sS, sW = 52, 53, 54
sT0, sT1, sT2 = 55, 56, 57
sK4, sK8 = 58, 59
sPB = 60
sSELLO, sSELHI = 61, 62
sOB0 = 63
sRB = 64
sMYOB, sMYYB = 65, 66
sSCALE = 67
sSPIN = 68
sYB = 69
sXP = 8
def srd(r): return f"s[{r}:{r+3}]"
vLANE, vKV, vWOO, vLW, vLR, vQP = 1, 2, 3, 4, 5, 6
vZERO, vCH, vG, vOA, vM, vLS, vCNT, vDA, vPAIR, vL16 = 7, 8, 9, 10, 11, 12, 13, 14, 15, 16
vYA, vONE = 17, 18
vA = 20
vQ = 28
vS = 32
vT = 44
vK = 52
vV = 88
vWOR = vK
vWOF = vK + 8
vR = vV
vO1 = vV
vW1 = 44
vPT = 32
vG2 = 60

LDS_QPK, LDS_FLAG, LDS_ML, LDS_OH, LDS_OPART, LDS_YPART = 0, 256, 512, 1024, 8192, 16384
YBOX = 262144
PBOX = 3 * YBOX
SLOT = 2048
nt = " nt"
soffs = ["0", f"s{sK4}", f"s{sK8}"]
def vr(b, n): return f"v[{b}:{b+n-1}]"

def swap_reduce(a):
    e("s_nop 1")
    for j in range(4):
        e(f"v_permlane32_swap_b32 v{a+j}, v{a+j+4}")
    for j in range(4):
        e(f"v_add_f32 v{a+j}, v{a+j}, v{a+j+4}")
    e("s_nop 1")
    for j in range(2):
        e(f"v_permlane16_swap_b32 v{a+j}, v{a+j+2}")
    for j in range(2):
        e(f"v_add_f32 v{a+j}, v{a+j}, v{a+j+2}")

def tree_sum_pairs(dst, tmp, n):
    idx = list(range(n))
    while len(idx) > 2:
        nxt = []
        for a, b in zip(idx[0::2], idx[1::2]):
            for c in range(2):
                e(f"v_add_f32 v{tmp+2*a+c}, v{tmp+2*a+c}, v{tmp+2*b+c}")
            nxt.append(a)
        idx = nxt
    for c in range(2):
        e(f"v_add_f32 v{dst+c}, v{tmp+2*idx[0]+c}, v{tmp+2*idx[1]+c}")

def spin_check(label_done):
    e(f"s_add_u32 s{sSPIN}, s{sSPIN}, 1")
    e(f"s_cmp_ge_u32 s{sSPIN}, {SPIN_LIMIT}")
    e(f"s_cbranch_scc1 {label_done}")

def lds_wait(name, off, val):
    e(f"s_mov_b32 s{sSPIN}, 0")
    e(f"L_{name}:")
    e(f"ds_read_b32 v{vT}, v{vZERO} offset:{off}")
    e("s_waitcnt lgkmcnt(0)")
    e(f"v_readfirstlane_b32 s{sT1}, v{vT}")
    spin_check(f"L_{name}_done")
    e(f"s_cmp_ge_u32 s{sT1}, {val}")
    e(f"s_cbranch_scc1 L_{name}_done")
    e("s_sleep 1")
    e(f"s_branch L_{name}")
    e(f"L_{name}_done:")

def max_chain(op, dst, regs):
    regs = list(regs)
    if len(regs) == 1:
        e(f"v_mov_b32 v{dst}, v{regs[0]}"); return
    if len(regs) == 2:
        e(f"v_max_{op} v{dst}, v{regs[0]}, v{regs[1]}"); return
    e(f"v_max3_{op} v{dst}, v{regs[0]}, v{regs[1]}, v{regs[2]}")
    i = 3
    while i + 1 < len(regs):
        e(f"v_max3_{op} v{dst}, v{dst}, v{regs[i]}, v{regs[i+1]}")
        i += 2
    if i < len(regs):
        e(f"v_max_{op} v{dst}, v{dst}, v{regs[i]}")

def poll_loop(name, loads, check_regs, sleep, tmp=vT):
    e(f"s_mov_b32 s{sSPIN}, 0")
    e(f"L_{name}:")
    for l in loads:
        e(l)
    e("s_waitcnt vmcnt(0)")
    max_chain("u32", tmp, check_regs)
    e(f"v_cmp_eq_u32 vcc, -1, v{tmp}")
    spin_check(f"L_{name}_done")
    e(f"s_cbranch_vccz L_{name}_done")
    if sleep:
        e(f"s_sleep {sleep}")
    e(f"s_branch L_{name}")
    e(f"L_{name}_done:")

def wo_loads():
    for i in range(2):
        e(f"buffer_load_dwordx4 {vr(vWOR+4*i,4)}, v{vWOO}, {srd(sWO)}, 0 offen offset:{i*1280}{nt}")

def stream_body(tag, ntile, loads_first, early_barrier):
    ops = []
    def issue():
        for i in range(ntile):
            if early_barrier and i == min(EARLY, ntile - 1):
                e("s_barrier")
            if len(ops) >= DEPTH:
                e(f"s_waitcnt vmcnt({DEPTH-1})")
            e(f"buffer_load_dwordx4 {vr(vK+4*i,4)}, v{vKV}, {srd(sK)}, {soffs[i//4]} offen offset:{(i%4)*1024}{nt}")
            ops.append(f"K{i}")
        for i in range(ntile):
            if len(ops) >= DEPTH:
                e(f"s_waitcnt vmcnt({DEPTH-1})")
            e(f"buffer_load_dwordx4 {vr(vV+4*i,4)}, v{vKV}, {srd(sV)}, {soffs[i//4]} offen offset:{(i%4)*1024}{nt}")
            ops.append(f"V{i}")
    def wait_for(name):
        n = len(ops) - 1 - ops.index(name)
        e(f"s_waitcnt vmcnt({n})")
    if loads_first:
        issue()
    e(f"v_lshlrev_b32 v{vQP}, 4, v{vCH}")
    lds_wait(f"waitq{tag}", LDS_FLAG, 1)
    e(f"ds_read_b128 {vr(vQ,4)}, v{vQP} offset:{LDS_QPK}")
    if not loads_first:
        issue()
    e("s_waitcnt lgkmcnt(0)")
    stamp(5)
    groups = [list(range(a, min(a+3, ntile))) for a in range(0, ntile, 3)]
    for grp in groups:
        wait_for(f"K{grp[-1]}")
        for d in range(4):
            for i in grp:
                c = "0" if d == 0 else f"v{vS+i}"
                e(f"v_dot2_f32_bf16 v{vS+i}, v{vK+4*i+d}, v{vQ+d}, {c}")
        e("s_nop 2")
        for r in (8, 4, 2, 1):
            for i in grp:
                e(f"v_add_f32_dpp v{vS+i}, v{vS+i}, v{vS+i} row_ror:{r} row_mask:0xf bank_mask:0xf")
            if len(grp) < 3:
                e("s_nop 1")
    wo_loads()
    ops += ["O0", "O1"]
    max_chain("f32", vM, range(vS, vS+ntile))
    e(f"v_mov_b32 v{vT}, v{vM}")
    e("s_nop 1")
    e(f"v_permlane32_swap_b32 v{vM}, v{vT}")
    e(f"v_max_f32 v{vM}, v{vM}, v{vT}")
    e(f"v_mov_b32 v{vT}, v{vM}")
    e("s_nop 1")
    e(f"v_permlane16_swap_b32 v{vM}, v{vT}")
    e(f"v_max_f32 v{vM}, v{vM}, v{vT}")
    e(f"v_mul_f32 v{vM}, s{sSCALE}, v{vM}")
    for i in range(ntile):
        e(f"v_fma_f32 v{vS+i}, v{vS+i}, s{sSCALE}, -v{vM}")
    for i in range(ntile):
        e(f"v_exp_f32 v{vS+i}, v{vS+i}")
    e("s_nop 0")
    e(f"v_add_f32 v{vLS}, v{vS}, v{vS+1}")
    for i in range(2, ntile):
        e(f"v_add_f32 v{vLS}, v{vLS}, v{vS+i}")
    e(f"v_mov_b32 v{vT}, v{vLS}")
    e("s_nop 1")
    e(f"v_permlane32_swap_b32 v{vLS}, v{vT}")
    e(f"v_add_f32 v{vLS}, v{vLS}, v{vT}")
    e(f"v_mov_b32 v{vT}, v{vLS}")
    e("s_nop 1")
    e(f"v_permlane16_swap_b32 v{vLS}, v{vT}")
    e(f"v_add_f32 v{vLS}, v{vLS}, v{vT}")
    stamp(6)
    for i in range(ntile):
        wait_for(f"V{i}")
        b = vV + 4*i
        for d in range(4):
            e(f"v_lshlrev_b32 v{vT+2*d}, 16, v{b+d}")
            e(f"v_and_b32 v{vT+2*d+1}, 0xffff0000, v{b+d}")
        for d in range(8):
            if i == 0:
                e(f"v_mul_f32 v{vA+d}, v{vT+d}, v{vS+i}")
            else:
                e(f"v_fmac_f32 v{vA+d}, v{vT+d}, v{vS+i}")
    swap_reduce(vA)

e("s_cmp_ge_u32 s2, 256")
e("s_cbranch_scc1 L_end")
e("s_load_dwordx16 s[4:19], s[0:1], 0")
if STAMPS:
    for i in range(NSTAMP):
        e(f"s_mov_b32 s{72+2*i}, 0xdeadbeef")
stamp(0)
e(f"v_mov_b32 v{vZERO}, 0")
e(f"ds_write_b32 v{vZERO}, v{vZERO} offset:{LDS_FLAG}")
e(f"s_and_b32 s{sH}, s2, 7")
e(f"s_lshl_b32 s{sH}, s{sH}, 2")
e(f"s_bfe_u32 s{sS}, s2, 0x20003")
e(f"s_add_u32 s{sH}, s{sH}, s{sS}")
e(f"s_lshr_b32 s{sS}, s2, 5")
e(f"v_and_b32 v{vLANE}, 63, v0")
e(f"v_lshrrev_b32 v{vT}, 6, v0")
e(f"v_and_b32 v{vCH}, 15, v0")
e(f"v_readfirstlane_b32 s{sW}, v{vT}")
e(f"v_bfe_u32 v{vG}, v0, 4, 2")
e(f"v_lshrrev_b32 v{vT+1}, 4, v0")
e(f"v_lshlrev_b32 v{vL16}, 4, v{vLANE}")
e(f"v_mul_u32_u24 v{vWOO}, 2560, v{vT+1}")
e(f"v_lshl_add_u32 v{vWOO}, v{vCH}, 4, v{vWOO}")
e(f"v_lshlrev_b32 v{vPAIR}, 2, v{vCH}")
e(f"v_add_u32 v{vPAIR}, v{vPAIR}, v{vG}")
e(f"v_lshlrev_b32 v{vPAIR}, 3, v{vPAIR}")
e(f"v_lshl_add_u32 v{vLW}, v{vT}, 9, v{vPAIR}")
e(f"v_lshlrev_b32 v{vLR}, 3, v{vLANE}")
e(f"v_lshlrev_b32 v{vOA}, 3, v{vT+1}")
e(f"v_lshlrev_b32 v{vDA}, 2, v{vLANE}")
e(f"v_mov_b32 v{vONE}, 1")
for j in range(4):
    e(f"v_mov_b32 v{vA+j}, -1")
e(f"s_mul_i32 s{sT0}, s{sS}, 135")
e(f"s_mul_i32 s{sT1}, s{sW}, 9")
e(f"s_add_u32 s{sT0}, s{sT0}, s{sT1}")
e(f"s_sub_u32 s{sT0}, s{sT0}, 144")
e(f"s_mul_i32 s{sT1}, s{sW}, 5")
e(f"s_add_u32 s{sT1}, s{sT1}, 940")
e(f"s_cmp_eq_u32 s{sW}, 0")
e(f"s_cselect_b32 s{sT1}, 1020, s{sT1}")
e(f"s_cmp_eq_u32 s{sS}, 0")
e(f"s_cselect_b32 s{sT0}, s{sT1}, s{sT0}")
e(f"s_max_i32 s{sT0}, s{sT0}, 0")
e(f"s_lshl_b32 s{sT0}, s{sT0}, 10")
e(f"v_add_u32 v{vKV}, s{sT0}, v{vL16}")
e(f"s_mov_b32 s{sK4}, 4096")
e(f"s_mov_b32 s{sK8}, 8192")
e(f"s_mov_b32 s{sSELLO}, 0x05040100")
e(f"s_mov_b32 s{sSELHI}, 0x07060302")
e(f"s_mov_b32 s{sSCALE}, 0x3e0293ee")
e(f"s_lshl_b32 s{sT0}, s{sH}, 22")
e(f"s_add_u32 s{sT0}, s{sT0}, 0x300000")
e(f"s_lshl_b32 s{sOB0}, s{sH}, 14")
e(f"s_lshl_b32 s{sT1}, s{sS}, 11")
e(f"s_add_u32 s{sMYOB}, s{sOB0}, s{sT1}")
e(f"s_lshl_b32 s{sYB}, s{sS}, 15")
e(f"s_add_u32 s{sYB}, s{sYB}, {2*YBOX}")
e(f"s_lshl_b32 s{sT1}, s{sH}, 10")
e(f"s_add_u32 s{sMYYB}, s{sYB}, s{sT1}")
for r in (sK, sV, sWQ, sWO, sWS, sOUT, sDBG):
    e(f"s_mov_b32 s{r+3}, 0x00020000")
e(f"s_mov_b32 s{sK+2}, {1<<20}")
e(f"s_mov_b32 s{sV+2}, {1<<20}")
e(f"s_mov_b32 s{sWS+2}, {(8<<20) if STAMPS else 5*YBOX}")
e(f"s_mov_b32 s{sOUT+2}, 1280")
e(f"s_mov_b32 s{sDBG+2}, 256")
e(f"s_mov_b32 s{sWQ+2}, {640*8192}")
e(f"s_mul_i32 s{sT2}, s{sH}, 163840")
e(f"s_min_u32 s{sSPIN}, s{sS}, 4")
e(f"s_lshl_b32 s{sSPIN}, s{sSPIN}, 8")
e(f"s_add_u32 s{sT2}, s{sT2}, s{sSPIN}")
e(f"s_sub_u32 s{sWO+2}, {4096*1280}, s{sT2}")
e(f"s_cmp_lt_u32 s{sS}, 5")
e(f"s_cselect_b32 s{sWO+2}, s{sWO+2}, 0")
e("s_waitcnt lgkmcnt(0)")
e(f"s_add_u32 s{sK}, s6, s{sT0}")
e(f"s_addc_u32 s{sK+1}, s7, 0")
e(f"s_add_u32 s{sV}, s8, s{sT0}")
e(f"s_addc_u32 s{sV+1}, s9, 0")
e(f"s_mov_b32 s{sWQ}, s10")
e(f"s_mov_b32 s{sWQ+1}, s11")
e(f"s_add_u32 s{sWO}, s12, s{sT2}")
e(f"s_addc_u32 s{sWO+1}, s13, 0")
e(f"s_mov_b32 s{sWS}, s18")
e(f"s_mov_b32 s{sWS+1}, s19")
e(f"s_mov_b32 s{sOUT}, s14")
e(f"s_mov_b32 s{sOUT+1}, s15")
e(f"s_mov_b32 s{sDBG}, s16")
e(f"s_mov_b32 s{sDBG+1}, s17")
e(f"s_cmp_lg_u32 s{sW}, 0")
e("s_cbranch_scc1 L_notw0")
e("s_setprio 3")
e(f"s_and_b32 s{sT0}, s{sH}, 3")
e(f"s_lshl_b32 s{sT0}, s{sT0}, 3")
e(f"s_add_u32 s{sT0}, s{sT0}, s{sS}")
e(f"s_lshr_b32 s{sT1}, s{sH}, 2")
e(f"s_mul_i32 s{sT2}, s{sT0}, 40")
e(f"s_add_u32 s6, s4, s{sT2}")
e(f"s_addc_u32 s7, s5, 0")
e(f"s_load_dwordx8 s[{sXP}:{sXP+7}], s[6:7], 0")
e(f"s_load_dwordx2 s[{sXP+8}:{sXP+9}], s[6:7], 32")
e(f"s_lshl_b32 s{sPB}, s{sT0}, 14")
e(f"s_lshl_b32 s{sT2}, s{sT1}, 11")
e(f"s_add_u32 s{sPB}, s{sPB}, s{sT2}")
e(f"s_add_u32 s{sPB}, s{sPB}, {PBOX}")
e(f"s_lshl_b32 s{sRB}, s{sH}, 3")
e(f"s_add_u32 s{sRB}, s{sRB}, s{sS}")
e(f"buffer_store_dwordx4 {vr(vA,4)}, v{vL16}, {srd(sWS)}, s{sPB} offen sc1")
e(f"buffer_store_dwordx4 {vr(vA,4)}, v{vL16}, {srd(sWS)}, s{sPB} offen offset:1024 sc1")
e(f"buffer_store_dwordx4 {vr(vA,4)}, v{vL16}, {srd(sWS)}, s{sMYOB} offen sc1")
e(f"buffer_store_dwordx4 {vr(vA,4)}, v{vL16}, {srd(sWS)}, s{sMYOB} offen offset:1024 sc1")
e(f"buffer_store_dwordx4 {vr(vA,4)}, v{vL16}, {srd(sWS)}, s{sMYYB} offen sc1")
e(f"s_mul_i32 s{sT0}, s{sT0}, {20*8192}")
e(f"s_lshl_b32 s{sT1}, s{sT1}, 10")
e(f"s_add_u32 s{sT0}, s{sT0}, s{sT1}")
for i in range(20):
    e(f"buffer_load_dwordx4 {vr(vW1+4*i,4)}, v{vL16}, {srd(sWQ)}, s{sT0} offen{nt}")
    if i < 19:
        e(f"s_add_u32 s{sT0}, s{sT0}, 8192")
e("s_barrier")
stamp(1)
e("s_waitcnt vmcnt(20)")
e("s_mov_b64 exec, 1")
e(f"buffer_store_byte v{vONE}, v{vZERO}, {srd(sDBG)}, s{sRB} offen sc1")
e("s_mov_b64 exec, -1")
stamp(2)
for j in range(8):
    e(f"v_mov_b32 v{vA+j}, 0")
e("s_waitcnt lgkmcnt(0)")
for j in range(10):
    e(f"s_waitcnt vmcnt({19 - 2*j})")
    A, B = vW1 + 8*j, vW1 + 8*j + 4
    for d in range(4):
        e(f"v_perm_b32 v{vPT+2*d}, v{B+d}, v{A+d}, s{sSELLO}")
        e(f"v_perm_b32 v{vPT+2*d+1}, v{B+d}, v{A+d}, s{sSELHI}")
    for d in range(4):
        e(f"v_dot2c_f32_bf16 v{vA+2*d}, s{sXP+j}, v{vPT+2*d}")
        e(f"v_dot2c_f32_bf16 v{vA+2*d+1}, s{sXP+j}, v{vPT+2*d+1}")
e(f"v_lshlrev_b32 v{vQP}, 5, v{vLANE}")
e("s_nop 1")
for j in range(8):
    e(f"v_min_u32 v{vA+j}, -2, v{vA+j}")
e(f"buffer_store_dwordx4 {vr(vA,4)}, v{vQP}, {srd(sWS)}, s{sPB} offen sc1")
e(f"buffer_store_dwordx4 {vr(vA+4,4)}, v{vQP}, {srd(sWS)}, s{sPB} offen offset:16 sc1")
e("s_barrier")
stamp(3)
e(f"v_and_b32 v{vQP}, 7, v{vLANE}")
e(f"v_lshlrev_b32 v{vQP}, 2, v{vQP}")
e(f"s_lshr_b32 s{sT2}, s{sH}, 2")
e(f"s_lshl_b32 s{sT2}, s{sT2}, 5")
e(f"v_mov_b32 v{vQ}, 0x01010101")
e(f"v_lshlrev_b32 v{vQ+1}, 2, v{vLANE}")
e(f"s_cmp_eq_u32 s{sS}, 0")
e("s_cbranch_scc1 L_pollr_s")
e(f"s_mov_b32 s{sSPIN}, 0")
e(f"s_mov_b32 s{sT0}, 0")
e("L_pollq:")
e(f"s_cmp_lg_u32 s{sT0}, 0")
e("s_cbranch_scc1 L_pollq_nr")
e(f"buffer_load_dword v{vCNT}, v{vQP}, {srd(sDBG)}, s{sT2} offen sc1")
e("L_pollq_nr:")
e(f"buffer_load_dword v{vA}, v{vQ+1}, {srd(sWS)}, s{sOB0} offen offset:1024 sc1")
e("s_waitcnt vmcnt(0)")
e(f"v_cmp_eq_u32 vcc, -1, v{vA}")
spin_check("L_pollq_done")
e("s_cmp_eq_u64 vcc, 0")
e(f"s_cselect_b32 s{sT1}, s{sT0}, 0")
e(f"s_cmp_lg_u32 s{sT1}, 0")
e("s_cbranch_scc1 L_pollq_done")
e(f"v_cmp_ne_u32 vcc, v{vQ}, v{vCNT}")
e("s_nop 4")
e("s_cmp_eq_u64 vcc, 0")
e(f"s_cselect_b32 s{sT0}, 1, 0")
e("s_branch L_pollq")
e("L_pollq_done:")
e(f"v_mov_b32 v{vQP}, v{vQ+1}")
wo_loads()
e(f"ds_write_b32 v{vQP}, v{vA} offset:{LDS_QPK}")
e("s_waitcnt lgkmcnt(0)")
e(f"ds_write_b32 v{vZERO}, v{vONE} offset:{LDS_FLAG}")
e("s_setprio 0")
stamp(4)
e(f"v_mov_b32 v{vM}, 0xff800000")
e(f"v_mov_b32 v{vLS}, 0")
e(f"v_mov_b32 v{vA}, 0")
e(f"v_mov_b32 v{vA+1}, 0")
e("s_branch L_tail")
e("L_pollr_s:")
e(f"s_mov_b32 s{sSPIN}, 0")
e("L_pollr:")
e(f"buffer_load_dword v{vCNT}, v{vQP}, {srd(sDBG)}, s{sT2} offen sc1")
e("s_waitcnt vmcnt(0)")
e(f"v_cmp_ne_u32 vcc, v{vQ}, v{vCNT}")
spin_check("L_pollr_done")
e("s_cbranch_vccz L_pollr_done")
e("s_sleep 2")
e("s_branch L_pollr")
e("L_pollr_done:")
e(f"v_mov_b32 v{vQP}, v{vQ+1}")
loads = [f"s_lshl_b32 s{sT0}, s{sH}, 9", f"s_add_u32 s{sT0}, s{sT0}, {PBOX}"]
for j in range(32):
    loads.append(f"buffer_load_dwordx2 {vr(vG2+2*j,2)}, v{vLR}, {srd(sWS)}, s{sT0} offen sc1")
    if j < 31:
        loads.append(f"s_add_u32 s{sT0}, s{sT0}, 16384")
poll_loop("pollp", loads, range(vG2, vG2+64), 4)
tree_sum_pairs(vA, vG2, 32)
e(f"v_cvt_pk_bf16_f32 v{vA}, v{vA}, v{vA+1}")
e(f"v_min_u32 v{vA}, -2, v{vA}")
e(f"buffer_store_dword v{vA}, v{vQP}, {srd(sWS)}, s{sOB0} offen offset:1024 sc1")
e(f"ds_write_b32 v{vQP}, v{vA} offset:{LDS_QPK}")
e("s_waitcnt lgkmcnt(0)")
e(f"ds_write_b32 v{vZERO}, v{vONE} offset:{LDS_FLAG}")
e("s_setprio 0")
stamp(4)
e("s_waitcnt vmcnt(0)")
stream_body("s0", 4, False, False)
e("s_branch L_tail")
e("L_notw0:")
e("s_barrier")
stamp(1)
e(f"s_cmp_eq_u32 s{sS}, 0")
e("s_cbranch_scc1 L_s_stream")
stream_body("t", 9, True, True)
e("s_branch L_tail")
e("L_s_stream:")
e("s_barrier")
stream_body("s", 5, False, False)

e("L_tail:")
e(f"ds_write_b64 v{vLW}, {vr(vA,2)} offset:{LDS_OPART}")
e(f"s_lshl_b32 s{sT0}, s{sW}, 2")
e(f"v_mov_b32 v{vT+1}, s{sT0}")
e(f"ds_write_b32 v{vT+1}, v{vM} offset:{LDS_ML}")
e(f"ds_write_b32 v{vT+1}, v{vLS} offset:{LDS_ML+64}")
e(f"v_mov_b32 v{vCNT}, 0x01010101")
e(f"s_lshl_b32 s{sT0}, s{sS}, 2")
e(f"s_cmp_lg_u32 s{sT0}, s{sH}")
e("s_cbranch_scc1 L_nocnt")
e(f"s_sub_u32 s{sT2}, s{sW}, 1")
e(f"s_cmp_ge_u32 s{sT2}, 8")
e("s_cbranch_scc1 L_nocnt")
e(f"buffer_load_dword v{vCNT}, v{vDA}, {srd(sDBG)}, 0 offen sc1")
e("L_nocnt:")
e("s_waitcnt vmcnt(0)")
for i in range(2):
    for d in range(4):
        e(f"v_lshlrev_b32 v{vWOF+8*i+2*d}, 16, v{vWOR+4*i+d}")
        e(f"v_and_b32 v{vWOF+8*i+2*d+1}, 0xffff0000, v{vWOR+4*i+d}")
stamp(7)
e("s_waitcnt lgkmcnt(0)")
e("s_barrier")
e(f"s_cmp_lg_u32 s{sW}, 0")
e("s_cbranch_scc1 L_nopub1")
vMW = 28
vLWl = list(range(76, 88)) + list(range(120, 124))
for j in range(4):
    e(f"ds_read_b128 {vr(vMW+4*j,4)}, v{vZERO} offset:{LDS_ML+16*j}")
for j in range(4):
    e(f"ds_read_b128 {vr(vLWl[4*j],4)}, v{vZERO} offset:{LDS_ML+64+16*j}")
for w in range(16):
    e(f"ds_read_b64 {vr(vR+2*w,2)}, v{vLR} offset:{LDS_OPART + w*512}")
e("s_waitcnt lgkmcnt(15)")
max_chain("f32", vM, range(vMW, vMW+16))
for w in range(16):
    e(f"v_sub_f32 v{vMW+w}, v{vMW+w}, v{vM}")
for w in range(16):
    e(f"v_exp_f32 v{vMW+w}, v{vMW+w}")
e("s_waitcnt lgkmcnt(0)")
for k in range(2):
    e(f"v_mul_f32 v{vA+4*k}, v{vMW+k}, v{vR+2*k}")
    e(f"v_mul_f32 v{vA+4*k+1}, v{vMW+k}, v{vR+2*k+1}")
    e(f"v_mul_f32 v{vA+4*k+3}, v{vMW+k}, v{vLWl[k]}")
for w in range(2, 16):
    k = w & 1
    e(f"v_fmac_f32 v{vA+4*k}, v{vMW+w}, v{vR+2*w}")
    e(f"v_fmac_f32 v{vA+4*k+1}, v{vMW+w}, v{vR+2*w+1}")
    e(f"v_fmac_f32 v{vA+4*k+3}, v{vMW+w}, v{vLWl[w]}")
e(f"v_add_f32 v{vA}, v{vA}, v{vA+4}")
e(f"v_add_f32 v{vA+1}, v{vA+1}, v{vA+5}")
e(f"v_add_f32 v{vA+3}, v{vA+3}, v{vA+7}")
e(f"v_min_u32 v{vA}, -2, v{vA}")
e(f"v_min_u32 v{vA+1}, -2, v{vA+1}")
e(f"v_min_u32 v{vA+2}, -2, v{vM}")
e(f"v_min_u32 v{vA+3}, -2, v{vA+3}")
e(f"buffer_store_dwordx4 {vr(vA,4)}, v{vL16}, {srd(sWS)}, s{sMYOB} offen sc1")
stamp(8)
e(f"s_cmp_ge_u32 s{sS}, 5")
e("s_cbranch_scc1 L_end")
e(f"v_and_b32 v{vT+1}, 7, v{vLANE}")
e(f"v_lshlrev_b32 v{vT+1}, 11, v{vT+1}")
poll_loop("pre1", [f"buffer_load_dword v{vT+2}, v{vT+1}, {srd(sWS)}, s{sOB0} offen offset:1020 sc1"], [vT+2], 1)
loads = []
for s in range(8):
    loads.append(f"s_add_u32 s{sT0}, s{sOB0}, {s*SLOT}")
    loads.append(f"buffer_load_dwordx4 {vr(vO1+4*s,4)}, v{vL16}, {srd(sWS)}, s{sT0} offen sc1")
poll_loop("poll1", loads, range(vO1, vO1+32), 0)
stamp(9)
max_chain("f32", vM, [vO1+4*s+2 for s in range(8)])
for s in range(8):
    e(f"v_sub_f32 v{vO1+4*s+2}, v{vO1+4*s+2}, v{vM}")
for s in range(8):
    e(f"v_exp_f32 v{vO1+4*s+2}, v{vO1+4*s+2}")
e("s_nop 0")
e(f"v_mul_f32 v{vLS}, v{vO1+2}, v{vO1+3}")
e(f"v_mul_f32 v{vT}, v{vO1+2}, v{vO1}")
e(f"v_mul_f32 v{vT+1}, v{vO1+2}, v{vO1+1}")
for s in range(1, 8):
    e(f"v_fmac_f32 v{vLS}, v{vO1+4*s+2}, v{vO1+4*s+3}")
    e(f"v_fmac_f32 v{vT}, v{vO1+4*s+2}, v{vO1+4*s}")
    e(f"v_fmac_f32 v{vT+1}, v{vO1+4*s+2}, v{vO1+4*s+1}")
e(f"v_rcp_f32 v{vLS}, v{vLS}")
e("s_nop 0")
e(f"v_mul_f32 v{vT}, v{vLS}, v{vT}")
e(f"v_mul_f32 v{vT+1}, v{vLS}, v{vT+1}")
e(f"ds_write_b64 v{vLR}, {vr(vT,2)} offset:{LDS_OH}")
e("s_waitcnt lgkmcnt(0)")
e("s_branch L_b3b")
e("L_nopub1:")
e(f"s_cmp_ge_u32 s{sS}, 5")
e("s_cbranch_scc1 L_end")
e("L_b3b:")
e("s_barrier")
e(f"ds_read_b64 {vr(vT,2)}, v{vOA} offset:{LDS_OH}")
e("s_waitcnt lgkmcnt(0)")
for c in range(8):
    e(f"v_mul_f32 v{vA+c}, v{vT}, v{vWOF+c}")
for c in range(8):
    e(f"v_fmac_f32 v{vA+c}, v{vT+1}, v{vWOF+8+c}")
swap_reduce(vA)
e(f"ds_write_b64 v{vLW}, {vr(vA,2)} offset:{LDS_YPART}")
e("s_waitcnt lgkmcnt(0)")
e("s_barrier")
e(f"s_cmp_lg_u32 s{sW}, 0")
e("s_cbranch_scc1 L_nopub2")
for w in range(16):
    e(f"ds_read_b64 {vr(vR+2*w,2)}, v{vLR} offset:{LDS_YPART + w*512}")
e("s_waitcnt lgkmcnt(0)")
tree_sum_pairs(vA, vR, 16)
e(f"v_min_u32 v{vA}, -2, v{vA}")
e(f"v_min_u32 v{vA+1}, -2, v{vA+1}")
e(f"buffer_store_dwordx2 {vr(vA,2)}, v{vLR}, {srd(sWS)}, s{sMYYB} offen sc1")
e("L_nopub2:")
stamp(10)
e(f"s_lshl_b32 s{sT0}, s{sS}, 2")
e(f"s_cmp_lg_u32 s{sT0}, s{sH}")
e("s_cbranch_scc1 L_end")
e(f"s_sub_u32 s{sT2}, s{sW}, 1")
e(f"s_cmp_ge_u32 s{sT2}, 8")
e("s_cbranch_scc1 L_end")
e(f"s_mov_b32 s{sSPIN}, 0")
e(f"v_mov_b32 v{vT}, 0x01010101")
e("L_ready:")
e(f"v_cmp_ne_u32 vcc, v{vT}, v{vCNT}")
spin_check("L_ready_ok")
e("s_nop 1")
e("s_cbranch_vccz L_ready_ok")
e(f"buffer_load_dword v{vCNT}, v{vDA}, {srd(sDBG)}, 0 offen sc1")
e("s_waitcnt vmcnt(0)")
e("s_branch L_ready")
e("L_ready_ok:")
e(f"v_lshrrev_b32 v{vT}, 2, v{vLANE}")
e(f"v_and_b32 v{vT+1}, 3, v{vLANE}")
e(f"v_lshlrev_b32 v{vYA}, 10, v{vT}")
e(f"v_lshl_add_u32 v{vYA}, v{vT+1}, 4, v{vYA}")
e(f"s_lshl_b32 s{sT0}, s{sT2}, 6")
e(f"s_add_u32 s{sT0}, s{sT0}, s{sYB}")
e(f"s_add_u32 s{sT1}, s{sT0}, 16384")
poll_loop("poll2", [f"buffer_load_dwordx4 {vr(vO1,4)}, v{vYA}, {srd(sWS)}, s{sT0} offen sc1",
                    f"buffer_load_dwordx4 {vr(vO1+4,4)}, v{vYA}, {srd(sWS)}, s{sT1} offen sc1"], range(vO1, vO1+8), 0)
for c in range(4):
    e(f"v_add_f32 v{vA+c}, v{vO1+c}, v{vO1+4+c}")
e("s_nop 1")
for r in (4, 8):
    for c in range(4):
        e(f"v_add_f32_dpp v{vA+c}, v{vA+c}, v{vA+c} row_ror:{r} row_mask:0xf bank_mask:0xf")
    e("s_nop 1")
for c in range(4):
    e(f"v_mov_b32 v{vA+4+c}, v{vA+c}")
e("s_nop 1")
for c in range(4):
    e(f"v_permlane32_swap_b32 v{vA+c}, v{vA+4+c}")
for c in range(4):
    e(f"v_add_f32 v{vA+c}, v{vA+c}, v{vA+4+c}")
for c in range(4):
    e(f"v_mov_b32 v{vA+4+c}, v{vA+c}")
e("s_nop 1")
for c in range(4):
    e(f"v_permlane16_swap_b32 v{vA+c}, v{vA+4+c}")
for c in range(4):
    e(f"v_add_f32 v{vA+c}, v{vA+c}, v{vA+4+c}")
e(f"v_cvt_pk_bf16_f32 v{vA}, v{vA}, v{vA+1}")
e(f"v_cvt_pk_bf16_f32 v{vA+1}, v{vA+2}, v{vA+3}")
e(f"s_lshl_b32 s{sT0}, s{sS}, 8")
e(f"s_lshl_b32 s{sT1}, s{sT2}, 5")
e(f"s_add_u32 s{sT0}, s{sT0}, s{sT1}")
e(f"v_lshlrev_b32 v{vT+1}, 3, v{vT+1}")
e("s_mov_b64 exec, 15")
e(f"buffer_store_dwordx2 {vr(vA,2)}, v{vT+1}, {srd(sOUT)}, s{sT0} offen")
stamp(11)
e("L_end:")
if STAMPS:
    e("s_cmp_ge_u32 s2, 256")
    e("s_cbranch_scc1 L_end2")
    e("s_waitcnt lgkmcnt(0)")
    e("s_mov_b64 exec, 1")
    e(f"s_lshl_b32 s{sT0}, s2, 4")
    e(f"s_add_u32 s{sT0}, s{sT0}, s{sW}")
    e(f"s_lshl_b32 s{sT0}, s{sT0}, 7")
    e(f"s_add_u32 s{sT0}, s{sT0}, {4<<20}")
    for i in range(NSTAMP):
        e(f"v_mov_b32 v{vK+i}, s{72+2*i}")
    for i in range(0, NSTAMP, 4):
        e(f"buffer_store_dwordx4 {vr(vK+i,4)}, v{vZERO}, {srd(sWS)}, s{sT0} offen offset:{i*4}")
    e("L_end2:")
e("s_endpgm")

path = sys.argv[1] if len(sys.argv) > 1 else "standalone__sliding_block_cached__decode.s"
open(path, "w").write(HEADER + "\n".join(out) + "\n" + FOOTER)
print("wrote", path, len(out), "lines")
```

```python
import sys, os

STAMPS = int(os.environ.get("STAMPS", "0"))
EARLY = int(os.environ.get("EARLY", "0"))
DEPTH = int(os.environ.get("DEPTH", "99"))
NSTAMP = 12
SPIN_LIMIT = 1 << 20

out = []
def e(s=""):
    out.append("    " + s if s and not s.endswith(":") else s)
def stamp(i):
    if STAMPS:
        e(f"s_memrealtime s[{72+2*i}:{73+2*i}]")

HEADER = """; Kernarg layout for this problem (64 bytes, ptrs only, base s[0:1]):
; @launch grid=(256,1,1) block=(1024,1,1) lds=32768
.amdgcn_target "amdgcn-amd-amdhsa--gfx950"
.text
.globl standalone__sliding_block_cached__decode_kernel
.p2align 8
.type standalone__sliding_block_cached__decode_kernel,@function
standalone__sliding_block_cached__decode_kernel:
"""
FOOTER = """.section .rodata,"a"
.p2align 6
.amdhsa_kernel standalone__sliding_block_cached__decode_kernel
  .amdhsa_next_free_vgpr 128
  .amdhsa_next_free_sgpr 96
  .amdhsa_accum_offset 128
  .amdhsa_group_segment_fixed_size 0
  .amdhsa_kernarg_size 64
  .amdhsa_user_sgpr_count 2
  .amdhsa_user_sgpr_kernarg_segment_ptr 1
  .amdhsa_system_sgpr_workgroup_id_x 1
.end_amdhsa_kernel
"""

sK, sV, sWQ, sWO, sWS, sOUT, sDBG = 20, 24, 28, 32, 40, 44, 48
sH, sS, sW = 52, 53, 54
sT0, sT1, sT2 = 55, 56, 57
sK4, sK8 = 58, 59
sPB = 60
sSELLO, sSELHI = 61, 62
sOB0 = 63
sRB = 64
sMYOB, sMYYB = 65, 66
sSCALE = 67
sSPIN = 68
sYB = 69
sXP = 8
def srd(r): return f"s[{r}:{r+3}]"
vLANE, vKV, vWOO, vLW, vLR, vQP = 1, 2, 3, 4, 5, 6
vZERO, vCH, vG, vOA, vM, vLS, vCNT, vDA, vPAIR, vL16 = 7, 8, 9, 10, 11, 12, 13, 14, 15, 16
vYA, vONE = 17, 18
vA = 20
vQ = 28
vS = 32
vT = 44
vK = 52
vV = 88
vWOR = vK
vWOF = vK + 8
vR = vV
vO1 = vV
vW1 = 44
vPT = 32
vG2 = 60

LDS_QPK, LDS_FLAG, LDS_ML, LDS_OH, LDS_OPART, LDS_YPART = 0, 256, 512, 1024, 8192, 16384
YBOX = 262144
PBOX = 3 * YBOX
SLOT = 2048
nt = " nt"
soffs = ["0", f"s{sK4}", f"s{sK8}"]
def vr(b, n): return f"v[{b}:{b+n-1}]"

def swap_reduce(a):
    e("s_nop 1")
    for j in range(4):
        e(f"v_permlane32_swap_b32 v{a+j}, v{a+j+4}")
    for j in range(4):
        e(f"v_add_f32 v{a+j}, v{a+j}, v{a+j+4}")
    e("s_nop 1")
    for j in range(2):
        e(f"v_permlane16_swap_b32 v{a+j}, v{a+j+2}")
    for j in range(2):
        e(f"v_add_f32 v{a+j}, v{a+j}, v{a+j+2}")

def tree_sum_pairs(dst, tmp, n):
    idx = list(range(n))
    while len(idx) > 2:
        nxt = []
        for a, b in zip(idx[0::2], idx[1::2]):
            for c in range(2):
                e(f"v_add_f32 v{tmp+2*a+c}, v{tmp+2*a+c}, v{tmp+2*b+c}")
            nxt.append(a)
        idx = nxt
    for c in range(2):
        e(f"v_add_f32 v{dst+c}, v{tmp+2*idx[0]+c}, v{tmp+2*idx[1]+c}")

def spin_check(label_done):
    e(f"s_add_u32 s{sSPIN}, s{sSPIN}, 1")
    e(f"s_cmp_ge_u32 s{sSPIN}, {SPIN_LIMIT}")
    e(f"s_cbranch_scc1 {label_done}")

def lds_wait(name, off, val):
    e(f"s_mov_b32 s{sSPIN}, 0")
    e(f"L_{name}:")
    e(f"ds_read_b32 v{vT}, v{vZERO} offset:{off}")
    e("s_waitcnt lgkmcnt(0)")
    e(f"v_readfirstlane_b32 s{sT1}, v{vT}")
    spin_check(f"L_{name}_done")
    e(f"s_cmp_ge_u32 s{sT1}, {val}")
    e(f"s_cbranch_scc1 L_{name}_done")
    e("s_sleep 1")
    e(f"s_branch L_{name}")
    e(f"L_{name}_done:")

def max_chain(op, dst, regs):
    regs = list(regs)
    if len(regs) == 1:
        e(f"v_mov_b32 v{dst}, v{regs[0]}"); return
    if len(regs) == 2:
        e(f"v_max_{op} v{dst}, v{regs[0]}, v{regs[1]}"); return
    e(f"v_max3_{op} v{dst}, v{regs[0]}, v{regs[1]}, v{regs[2]}")
    i = 3
    while i + 1 < len(regs):
        e(f"v_max3_{op} v{dst}, v{dst}, v{regs[i]}, v{regs[i+1]}")
        i += 2
    if i < len(regs):
        e(f"v_max_{op} v{dst}, v{dst}, v{regs[i]}")

def poll_loop(name, loads, check_regs, sleep, tmp=vT):
    e(f"s_mov_b32 s{sSPIN}, 0")
    e(f"L_{name}:")
    for l in loads:
        e(l)
    e("s_waitcnt vmcnt(0)")
    max_chain("u32", tmp, check_regs)
    e(f"v_cmp_eq_u32 vcc, -1, v{tmp}")
    spin_check(f"L_{name}_done")
    e(f"s_cbranch_vccz L_{name}_done")
    if sleep:
        e(f"s_sleep {sleep}")
    e(f"s_branch L_{name}")
    e(f"L_{name}_done:")

def wo_loads():
    for i in range(2):
        e(f"buffer_load_dwordx4 {vr(vWOR+4*i,4)}, v{vWOO}, {srd(sWO)}, 0 offen offset:{i*1280}{nt}")

def stream_body(tag, ntile, loads_first, early_barrier):
    ops = []
    def issue():
        for i in range(ntile):
            if early_barrier and i == min(EARLY, ntile - 1):
                e("s_barrier")
            if len(ops) >= DEPTH:
                e(f"s_waitcnt vmcnt({DEPTH-1})")
            e(f"buffer_load_dwordx4 {vr(vK+4*i,4)}, v{vKV}, {srd(sK)}, {soffs[i//4]} offen offset:{(i%4)*1024}{nt}")
            ops.append(f"K{i}")
        for i in range(ntile):
            if len(ops) >= DEPTH:
                e(f"s_waitcnt vmcnt({DEPTH-1})")
            e(f"buffer_load_dwordx4 {vr(vV+4*i,4)}, v{vKV}, {srd(sV)}, {soffs[i//4]} offen offset:{(i%4)*1024}{nt}")
            ops.append(f"V{i}")
    def wait_for(name):
        n = len(ops) - 1 - ops.index(name)
        e(f"s_waitcnt vmcnt({n})")
    if loads_first:
        issue()
    e(f"v_lshlrev_b32 v{vQP}, 4, v{vCH}")
    lds_wait(f"waitq{tag}", LDS_FLAG, 1)
    e(f"ds_read_b128 {vr(vQ,4)}, v{vQP} offset:{LDS_QPK}")
    if not loads_first:
        issue()
    e("s_waitcnt lgkmcnt(0)")
    stamp(5)
    groups = [list(range(a, min(a+3, ntile))) for a in range(0, ntile, 3)]
    for grp in groups:
        wait_for(f"K{grp[-1]}")
        for d in range(4):
            for i in grp:
                c = "0" if d == 0 else f"v{vS+i}"
                e(f"v_dot2_f32_bf16 v{vS+i}, v{vK+4*i+d}, v{vQ+d}, {c}")
        e("s_nop 2")
        for r in (8, 4, 2, 1):
            for i in grp:
                e(f"v_add_f32_dpp v{vS+i}, v{vS+i}, v{vS+i} row_ror:{r} row_mask:0xf bank_mask:0xf")
            if len(grp) < 3:
                e("s_nop 1")
    wo_loads()
    ops += ["O0", "O1"]
    max_chain("f32", vM, range(vS, vS+ntile))
    e(f"v_mov_b32 v{vT}, v{vM}")
    e("s_nop 1")
    e(f"v_permlane32_swap_b32 v{vM}, v{vT}")
    e(f"v_max_f32 v{vM}, v{vM}, v{vT}")
    e(f"v_mov_b32 v{vT}, v{vM}")
    e("s_nop 1")
    e(f"v_permlane16_swap_b32 v{vM}, v{vT}")
    e(f"v_max_f32 v{vM}, v{vM}, v{vT}")
    e(f"v_mul_f32 v{vM}, s{sSCALE}, v{vM}")
    for i in range(ntile):
        e(f"v_fma_f32 v{vS+i}, v{vS+i}, s{sSCALE}, -v{vM}")
    for i in range(ntile):
        e(f"v_exp_f32 v{vS+i}, v{vS+i}")
    e("s_nop 0")
    e(f"v_add_f32 v{vLS}, v{vS}, v{vS+1}")
    for i in range(2, ntile):
        e(f"v_add_f32 v{vLS}, v{vLS}, v{vS+i}")
    e(f"v_mov_b32 v{vT}, v{vLS}")
    e("s_nop 1")
    e(f"v_permlane32_swap_b32 v{vLS}, v{vT}")
    e(f"v_add_f32 v{vLS}, v{vLS}, v{vT}")
    e(f"v_mov_b32 v{vT}, v{vLS}")
    e("s_nop 1")
    e(f"v_permlane16_swap_b32 v{vLS}, v{vT}")
    e(f"v_add_f32 v{vLS}, v{vLS}, v{vT}")
    stamp(6)
    for i in range(ntile):
        wait_for(f"V{i}")
        b = vV + 4*i
        for d in range(4):
            e(f"v_lshlrev_b32 v{vT+2*d}, 16, v{b+d}")
            e(f"v_and_b32 v{vT+2*d+1}, 0xffff0000, v{b+d}")
        for d in range(8):
            if i == 0:
                e(f"v_mul_f32 v{vA+d}, v{vT+d}, v{vS+i}")
            else:
                e(f"v_fmac_f32 v{vA+d}, v{vT+d}, v{vS+i}")
    swap_reduce(vA)

e("s_cmp_ge_u32 s2, 256")
e("s_cbranch_scc1 L_end")
e("s_load_dwordx16 s[4:19], s[0:1], 0")
if STAMPS:
    for i in range(NSTAMP):
        e(f"s_mov_b32 s{72+2*i}, 0xdeadbeef")
stamp(0)
e(f"v_mov_b32 v{vZERO}, 0")
e(f"ds_write_b32 v{vZERO}, v{vZERO} offset:{LDS_FLAG}")
e(f"s_and_b32 s{sH}, s2, 7")
e(f"s_lshl_b32 s{sH}, s{sH}, 2")
e(f"s_bfe_u32 s{sS}, s2, 0x20003")
e(f"s_add_u32 s{sH}, s{sH}, s{sS}")
e(f"s_lshr_b32 s{sS}, s2, 5")
e(f"v_and_b32 v{vLANE}, 63, v0")
e(f"v_lshrrev_b32 v{vT}, 6, v0")
e(f"v_and_b32 v{vCH}, 15, v0")
e(f"v_readfirstlane_b32 s{sW}, v{vT}")
e(f"v_bfe_u32 v{vG}, v0, 4, 2")
e(f"v_lshrrev_b32 v{vT+1}, 4, v0")
e(f"v_lshlrev_b32 v{vL16}, 4, v{vLANE}")
e(f"v_mul_u32_u24 v{vWOO}, 2560, v{vT+1}")
e(f"v_lshl_add_u32 v{vWOO}, v{vCH}, 4, v{vWOO}")
e(f"v_lshlrev_b32 v{vPAIR}, 2, v{vCH}")
e(f"v_add_u32 v{vPAIR}, v{vPAIR}, v{vG}")
e(f"v_lshlrev_b32 v{vPAIR}, 3, v{vPAIR}")
e(f"v_lshl_add_u32 v{vLW}, v{vT}, 9, v{vPAIR}")
e(f"v_lshlrev_b32 v{vLR}, 3, v{vLANE}")
e(f"v_lshlrev_b32 v{vOA}, 3, v{vT+1}")
e(f"v_lshlrev_b32 v{vDA}, 2, v{vLANE}")
e(f"v_mov_b32 v{vONE}, 1")
for j in range(4):
    e(f"v_mov_b32 v{vA+j}, -1")
e(f"s_mul_i32 s{sT0}, s{sS}, 135")
e(f"s_mul_i32 s{sT1}, s{sW}, 9")
e(f"s_add_u32 s{sT0}, s{sT0}, s{sT1}")
e(f"s_sub_u32 s{sT0}, s{sT0}, 144")
e(f"s_mul_i32 s{sT1}, s{sW}, 5")
e(f"s_add_u32 s{sT1}, s{sT1}, 940")
e(f"s_cmp_eq_u32 s{sW}, 0")
e(f"s_cselect_b32 s{sT1}, 1020, s{sT1}")
e(f"s_cmp_eq_u32 s{sS}, 0")
e(f"s_cselect_b32 s{sT0}, s{sT1}, s{sT0}")
e(f"s_max_i32 s{sT0}, s{sT0}, 0")
e(f"s_lshl_b32 s{sT0}, s{sT0}, 10")
e(f"v_add_u32 v{vKV}, s{sT0}, v{vL16}")
e(f"s_mov_b32 s{sK4}, 4096")
e(f"s_mov_b32 s{sK8}, 8192")
e(f"s_mov_b32 s{sSELLO}, 0x05040100")
e(f"s_mov_b32 s{sSELHI}, 0x07060302")
e(f"s_mov_b32 s{sSCALE}, 0x3e0293ee")
e(f"s_lshl_b32 s{sT0}, s{sH}, 22")
e(f"s_add_u32 s{sT0}, s{sT0}, 0x300000")
e(f"s_lshl_b32 s{sOB0}, s{sH}, 14")
e(f"s_lshl_b32 s{sT1}, s{sS}, 11")
e(f"s_add_u32 s{sMYOB}, s{sOB0}, s{sT1}")
e(f"s_lshl_b32 s{sYB}, s{sS}, 15")
e(f"s_add_u32 s{sYB}, s{sYB}, {2*YBOX}")
e(f"s_lshl_b32 s{sT1}, s{sH}, 10")
e(f"s_add_u32 s{sMYYB}, s{sYB}, s{sT1}")
for r in (sK, sV, sWQ, sWO, sWS, sOUT, sDBG):
    e(f"s_mov_b32 s{r+3}, 0x00020000")
e(f"s_mov_b32 s{sK+2}, {1<<20}")
e(f"s_mov_b32 s{sV+2}, {1<<20}")
e(f"s_mov_b32 s{sWS+2}, {(8<<20) if STAMPS else 5*YBOX}")
e(f"s_mov_b32 s{sOUT+2}, 1280")
e(f"s_mov_b32 s{sDBG+2}, 256")
e(f"s_mov_b32 s{sWQ+2}, {640*8192}")
e(f"s_mul_i32 s{sT2}, s{sH}, 163840")
e(f"s_min_u32 s{sSPIN}, s{sS}, 4")
e(f"s_lshl_b32 s{sSPIN}, s{sSPIN}, 8")
e(f"s_add_u32 s{sT2}, s{sT2}, s{sSPIN}")
e(f"s_sub_u32 s{sWO+2}, {4096*1280}, s{sT2}")
e(f"s_cmp_lt_u32 s{sS}, 5")
e(f"s_cselect_b32 s{sWO+2}, s{sWO+2}, 0")
e("s_waitcnt lgkmcnt(0)")
e(f"s_add_u32 s{sK}, s6, s{sT0}")
e(f"s_addc_u32 s{sK+1}, s7, 0")
e(f"s_add_u32 s{sV}, s8, s{sT0}")
e(f"s_addc_u32 s{sV+1}, s9, 0")
e(f"s_mov_b32 s{sWQ}, s10")
e(f"s_mov_b32 s{sWQ+1}, s11")
e(f"s_add_u32 s{sWO}, s12, s{sT2}")
e(f"s_addc_u32 s{sWO+1}, s13, 0")
e(f"s_mov_b32 s{sWS}, s18")
e(f"s_mov_b32 s{sWS+1}, s19")
e(f"s_mov_b32 s{sOUT}, s14")
e(f"s_mov_b32 s{sOUT+1}, s15")
e(f"s_mov_b32 s{sDBG}, s16")
e(f"s_mov_b32 s{sDBG+1}, s17")
e(f"s_cmp_lg_u32 s{sW}, 0")
e("s_cbranch_scc1 L_notw0")
e("s_setprio 3")
e(f"s_and_b32 s{sT0}, s{sH}, 3")
e(f"s_lshl_b32 s{sT0}, s{sT0}, 3")
e(f"s_add_u32 s{sT0}, s{sT0}, s{sS}")
e(f"s_lshr_b32 s{sT1}, s{sH}, 2")
e(f"s_mul_i32 s{sT2}, s{sT0}, 40")
e(f"s_add_u32 s6, s4, s{sT2}")
e(f"s_addc_u32 s7, s5, 0")
e(f"s_load_dwordx8 s[{sXP}:{sXP+7}], s[6:7], 0")
e(f"s_load_dwordx2 s[{sXP+8}:{sXP+9}], s[6:7], 32")
e(f"s_lshl_b32 s{sPB}, s{sT0}, 14")
e(f"s_lshl_b32 s{sT2}, s{sT1}, 11")
e(f"s_add_u32 s{sPB}, s{sPB}, s{sT2}")
e(f"s_add_u32 s{sPB}, s{sPB}, {PBOX}")
e(f"s_lshl_b32 s{sRB}, s{sH}, 3")
e(f"s_add_u32 s{sRB}, s{sRB}, s{sS}")
e(f"buffer_store_dwordx4 {vr(vA,4)}, v{vL16}, {srd(sWS)}, s{sPB} offen sc1")
e(f"buffer_store_dwordx4 {vr(vA,4)}, v{vL16}, {srd(sWS)}, s{sPB} offen offset:1024 sc1")
e(f"buffer_store_dwordx4 {vr(vA,4)}, v{vL16}, {srd(sWS)}, s{sMYOB} offen sc1")
e(f"buffer_store_dwordx4 {vr(vA,4)}, v{vL16}, {srd(sWS)}, s{sMYOB} offen offset:1024 sc1")
e(f"buffer_store_dwordx4 {vr(vA,4)}, v{vL16}, {srd(sWS)}, s{sMYYB} offen sc1")
e(f"s_mul_i32 s{sT0}, s{sT0}, {20*8192}")
e(f"s_lshl_b32 s{sT1}, s{sT1}, 10")
e(f"s_add_u32 s{sT0}, s{sT0}, s{sT1}")
for i in range(20):
    e(f"buffer_load_dwordx4 {vr(vW1+4*i,4)}, v{vL16}, {srd(sWQ)}, s{sT0} offen{nt}")
    if i < 19:
        e(f"s_add_u32 s{sT0}, s{sT0}, 8192")
e("s_barrier")
stamp(1)
e("s_waitcnt vmcnt(20)")
e("s_mov_b64 exec, 1")
e(f"buffer_store_byte v{vONE}, v{vZERO}, {srd(sDBG)}, s{sRB} offen sc1")
e("s_mov_b64 exec, -1")
stamp(2)
for j in range(8):
    e(f"v_mov_b32 v{vA+j}, 0")
e("s_waitcnt lgkmcnt(0)")
for j in range(10):
    e(f"s_waitcnt vmcnt({19 - 2*j})")
    A, B = vW1 + 8*j, vW1 + 8*j + 4
    for d in range(4):
        e(f"v_perm_b32 v{vPT+2*d}, v{B+d}, v{A+d}, s{sSELLO}")
        e(f"v_perm_b32 v{vPT+2*d+1}, v{B+d}, v{A+d}, s{sSELHI}")
    for d in range(4):
        e(f"v_dot2c_f32_bf16 v{vA+2*d}, s{sXP+j}, v{vPT+2*d}")
        e(f"v_dot2c_f32_bf16 v{vA+2*d+1}, s{sXP+j}, v{vPT+2*d+1}")
e(f"v_lshlrev_b32 v{vQP}, 5, v{vLANE}")
e("s_nop 1")
for j in range(8):
    e(f"v_min_u32 v{vA+j}, -2, v{vA+j}")
e(f"buffer_store_dwordx4 {vr(vA,4)}, v{vQP}, {srd(sWS)}, s{sPB} offen sc1")
e(f"buffer_store_dwordx4 {vr(vA+4,4)}, v{vQP}, {srd(sWS)}, s{sPB} offen offset:16 sc1")
e("s_barrier")
stamp(3)
e(f"v_and_b32 v{vQP}, 7, v{vLANE}")
e(f"v_lshlrev_b32 v{vQP}, 2, v{vQP}")
e(f"s_lshr_b32 s{sT2}, s{sH}, 2")
e(f"s_lshl_b32 s{sT2}, s{sT2}, 5")
e(f"v_mov_b32 v{vQ}, 0x01010101")
e(f"v_lshlrev_b32 v{vQ+1}, 2, v{vLANE}")
e(f"s_cmp_eq_u32 s{sS}, 0")
e("s_cbranch_scc1 L_pollr_s")
e(f"s_mov_b32 s{sSPIN}, 0")
e(f"s_mov_b32 s{sT0}, 0")
e("L_pollq:")
e(f"s_cmp_lg_u32 s{sT0}, 0")
e("s_cbranch_scc1 L_pollq_nr")
e(f"buffer_load_dword v{vCNT}, v{vQP}, {srd(sDBG)}, s{sT2} offen sc1")
e("L_pollq_nr:")
e(f"buffer_load_dword v{vA}, v{vQ+1}, {srd(sWS)}, s{sOB0} offen offset:1024 sc1")
e("s_waitcnt vmcnt(0)")
e(f"v_cmp_eq_u32 vcc, -1, v{vA}")
spin_check("L_pollq_done")
e("s_cmp_eq_u64 vcc, 0")
e(f"s_cselect_b32 s{sT1}, s{sT0}, 0")
e(f"s_cmp_lg_u32 s{sT1}, 0")
e("s_cbranch_scc1 L_pollq_done")
e(f"v_cmp_ne_u32 vcc, v{vQ}, v{vCNT}")
e("s_nop 4")
e("s_cmp_eq_u64 vcc, 0")
e(f"s_cselect_b32 s{sT0}, 1, 0")
e("s_branch L_pollq")
e("L_pollq_done:")
e(f"v_mov_b32 v{vQP}, v{vQ+1}")
wo_loads()
e(f"ds_write_b32 v{vQP}, v{vA} offset:{LDS_QPK}")
e("s_waitcnt lgkmcnt(0)")
e(f"ds_write_b32 v{vZERO}, v{vONE} offset:{LDS_FLAG}")
e("s_setprio 0")
stamp(4)
e(f"v_mov_b32 v{vM}, 0xff800000")
e(f"v_mov_b32 v{vLS}, 0")
e(f"v_mov_b32 v{vA}, 0")
e(f"v_mov_b32 v{vA+1}, 0")
e("s_branch L_tail")
e("L_pollr_s:")
e(f"s_mov_b32 s{sSPIN}, 0")
e("L_pollr:")
e(f"buffer_load_dword v{vCNT}, v{vQP}, {srd(sDBG)}, s{sT2} offen sc1")
e("s_waitcnt vmcnt(0)")
e(f"v_cmp_ne_u32 vcc, v{vQ}, v{vCNT}")
spin_check("L_pollr_done")
e("s_cbranch_vccz L_pollr_done")
e("s_sleep 2")
e("s_branch L_pollr")
e("L_pollr_done:")
e(f"v_mov_b32 v{vQP}, v{vQ+1}")
loads = [f"s_lshl_b32 s{sT0}, s{sH}, 9", f"s_add_u32 s{sT0}, s{sT0}, {PBOX}"]
for j in range(32):
    loads.append(f"buffer_load_dwordx2 {vr(vG2+2*j,2)}, v{vLR}, {srd(sWS)}, s{sT0} offen sc1")
    if j < 31:
        loads.append(f"s_add_u32 s{sT0}, s{sT0}, 16384")
poll_loop("pollp", loads, range(vG2, vG2+64), 4)
tree_sum_pairs(vA, vG2, 32)
e(f"v_cvt_pk_bf16_f32 v{vA}, v{vA}, v{vA+1}")
e(f"v_min_u32 v{vA}, -2, v{vA}")
e(f"buffer_store_dword v{vA}, v{vQP}, {srd(sWS)}, s{sOB0} offen offset:1024 sc1")
e(f"ds_write_b32 v{vQP}, v{vA} offset:{LDS_QPK}")
e("s_waitcnt lgkmcnt(0)")
e(f"ds_write_b32 v{vZERO}, v{vONE} offset:{LDS_FLAG}")
e("s_setprio 0")
stamp(4)
e("s_waitcnt vmcnt(0)")
stream_body("s0", 4, False, False)
e("s_branch L_tail")
e("L_notw0:")
e("s_barrier")
stamp(1)
e(f"s_cmp_eq_u32 s{sS}, 0")
e("s_cbranch_scc1 L_s_stream")
stream_body("t", 9, True, True)
e("s_branch L_tail")
e("L_s_stream:")
e("s_barrier")
stream_body("s", 5, False, False)

e("L_tail:")
e(f"ds_write_b64 v{vLW}, {vr(vA,2)} offset:{LDS_OPART}")
e(f"s_lshl_b32 s{sT0}, s{sW}, 2")
e(f"v_mov_b32 v{vT+1}, s{sT0}")
e(f"ds_write_b32 v{vT+1}, v{vM} offset:{LDS_ML}")
e(f"ds_write_b32 v{vT+1}, v{vLS} offset:{LDS_ML+64}")
e(f"v_mov_b32 v{vCNT}, 0x01010101")
e(f"s_lshl_b32 s{sT0}, s{sS}, 2")
e(f"s_cmp_lg_u32 s{sT0}, s{sH}")
e("s_cbranch_scc1 L_nocnt")
e(f"s_sub_u32 s{sT2}, s{sW}, 1")
e(f"s_cmp_ge_u32 s{sT2}, 8")
e("s_cbranch_scc1 L_nocnt")
e(f"buffer_load_dword v{vCNT}, v{vDA}, {srd(sDBG)}, 0 offen sc1")
e("L_nocnt:")
e("s_waitcnt vmcnt(0)")
for i in range(2):
    for d in range(4):
        e(f"v_lshlrev_b32 v{vWOF+8*i+2*d}, 16, v{vWOR+4*i+d}")
        e(f"v_and_b32 v{vWOF+8*i+2*d+1}, 0xffff0000, v{vWOR+4*i+d}")
stamp(7)
e("s_waitcnt lgkmcnt(0)")
e("s_barrier")
e(f"s_cmp_lg_u32 s{sW}, 0")
e("s_cbranch_scc1 L_nopub1")
vMW = 28
vLWl = list(range(76, 88)) + list(range(120, 124))
for j in range(4):
    e(f"ds_read_b128 {vr(vMW+4*j,4)}, v{vZERO} offset:{LDS_ML+16*j}")
for j in range(4):
    e(f"ds_read_b128 {vr(vLWl[4*j],4)}, v{vZERO} offset:{LDS_ML+64+16*j}")
for w in range(16):
    e(f"ds_read_b64 {vr(vR+2*w,2)}, v{vLR} offset:{LDS_OPART + w*512}")
e("s_waitcnt lgkmcnt(15)")
max_chain("f32", vM, range(vMW, vMW+16))
for w in range(16):
    e(f"v_sub_f32 v{vMW+w}, v{vMW+w}, v{vM}")
for w in range(16):
    e(f"v_exp_f32 v{vMW+w}, v{vMW+w}")
e("s_waitcnt lgkmcnt(0)")
for k in range(2):
    e(f"v_mul_f32 v{vA+4*k}, v{vMW+k}, v{vR+2*k}")
    e(f"v_mul_f32 v{vA+4*k+1}, v{vMW+k}, v{vR+2*k+1}")
    e(f"v_mul_f32 v{vA+4*k+3}, v{vMW+k}, v{vLWl[k]}")
for w in range(2, 16):
    k = w & 1
    e(f"v_fmac_f32 v{vA+4*k}, v{vMW+w}, v{vR+2*w}")
    e(f"v_fmac_f32 v{vA+4*k+1}, v{vMW+w}, v{vR+2*w+1}")
    e(f"v_fmac_f32 v{vA+4*k+3}, v{vMW+w}, v{vLWl[w]}")
e(f"v_add_f32 v{vA}, v{vA}, v{vA+4}")
e(f"v_add_f32 v{vA+1}, v{vA+1}, v{vA+5}")
e(f"v_add_f32 v{vA+3}, v{vA+3}, v{vA+7}")
e(f"v_min_u32 v{vA}, -2, v{vA}")
e(f"v_min_u32 v{vA+1}, -2, v{vA+1}")
e(f"v_min_u32 v{vA+2}, -2, v{vM}")
e(f"v_min_u32 v{vA+3}, -2, v{vA+3}")
e(f"buffer_store_dwordx4 {vr(vA,4)}, v{vL16}, {srd(sWS)}, s{sMYOB} offen sc1")
stamp(8)
e(f"s_cmp_ge_u32 s{sS}, 5")
e("s_cbranch_scc1 L_end")
sPEND = 71
e(f"s_mov_b32 s{sPEND}, 0xff")
e(f"s_mov_b32 s{sSPIN}, 0")
e("L_poll1:")
for s in range(8):
    e(f"s_bitcmp1_b32 s{sPEND}, {s}")
    e(f"s_cbranch_scc0 L_p1s{s}")
    e(f"s_add_u32 s{sT0}, s{sOB0}, {s*SLOT}")
    e(f"buffer_load_dwordx4 {vr(vO1+4*s,4)}, v{vL16}, {srd(sWS)}, s{sT0} offen sc1")
    e(f"L_p1s{s}:")
e("s_waitcnt vmcnt(0)")
for s in range(8):
    e(f"v_max3_u32 v{vT+(s&3)}, v{vO1+4*s}, v{vO1+4*s+1}, v{vO1+4*s+2}")
    e(f"v_max_u32 v{vT+(s&3)}, v{vT+(s&3)}, v{vO1+4*s+3}")
    e(f"v_cmp_eq_u32 s[{4+2*s}:{5+2*s}], -1, v{vT+(s&3)}")
e("s_nop 3")
for s in range(8):
    e(f"s_cmp_eq_u64 s[{4+2*s}:{5+2*s}], 0")
    e(f"s_cbranch_scc0 L_p1k{s}")
    e(f"s_bitset0_b32 s{sPEND}, {s}")
    e(f"L_p1k{s}:")
spin_check("L_poll1_done")
e(f"s_cmp_eq_u32 s{sPEND}, 0")
e("s_cbranch_scc1 L_poll1_done")
e(f"s_bcnt1_i32_b32 s{sT0}, s{sPEND}")
e(f"s_cmp_lt_u32 s{sT0}, 3")
e("s_cbranch_scc1 L_poll1")
e("s_sleep 8")
e("s_branch L_poll1")
e("L_poll1_done:")
stamp(9)
max_chain("f32", vM, [vO1+4*s+2 for s in range(8)])
for s in range(8):
    e(f"v_sub_f32 v{vO1+4*s+2}, v{vO1+4*s+2}, v{vM}")
for s in range(8):
    e(f"v_exp_f32 v{vO1+4*s+2}, v{vO1+4*s+2}")
e("s_nop 0")
e(f"v_mul_f32 v{vLS}, v{vO1+2}, v{vO1+3}")
e(f"v_mul_f32 v{vT}, v{vO1+2}, v{vO1}")
e(f"v_mul_f32 v{vT+1}, v{vO1+2}, v{vO1+1}")
for s in range(1, 8):
    e(f"v_fmac_f32 v{vLS}, v{vO1+4*s+2}, v{vO1+4*s+3}")
    e(f"v_fmac_f32 v{vT}, v{vO1+4*s+2}, v{vO1+4*s}")
    e(f"v_fmac_f32 v{vT+1}, v{vO1+4*s+2}, v{vO1+4*s+1}")
e(f"v_rcp_f32 v{vLS}, v{vLS}")
e("s_nop 0")
e(f"v_mul_f32 v{vT}, v{vLS}, v{vT}")
e(f"v_mul_f32 v{vT+1}, v{vLS}, v{vT+1}")
e(f"ds_write_b64 v{vLR}, {vr(vT,2)} offset:{LDS_OH}")
e("s_waitcnt lgkmcnt(0)")
e("s_branch L_b3b")
e("L_nopub1:")
e(f"s_cmp_ge_u32 s{sS}, 5")
e("s_cbranch_scc1 L_end")
e("L_b3b:")
e("s_barrier")
e(f"ds_read_b64 {vr(vT,2)}, v{vOA} offset:{LDS_OH}")
e("s_waitcnt lgkmcnt(0)")
for c in range(8):
    e(f"v_mul_f32 v{vA+c}, v{vT}, v{vWOF+c}")
for c in range(8):
    e(f"v_fmac_f32 v{vA+c}, v{vT+1}, v{vWOF+8+c}")
swap_reduce(vA)
e(f"ds_write_b64 v{vLW}, {vr(vA,2)} offset:{LDS_YPART}")
e("s_waitcnt lgkmcnt(0)")
e("s_barrier")
e(f"s_cmp_lg_u32 s{sW}, 0")
e("s_cbranch_scc1 L_nopub2")
for w in range(16):
    e(f"ds_read_b64 {vr(vR+2*w,2)}, v{vLR} offset:{LDS_YPART + w*512}")
e("s_waitcnt lgkmcnt(0)")
tree_sum_pairs(vA, vR, 16)
e(f"v_min_u32 v{vA}, -2, v{vA}")
e(f"v_min_u32 v{vA+1}, -2, v{vA+1}")
e(f"buffer_store_dwordx2 {vr(vA,2)}, v{vLR}, {srd(sWS)}, s{sMYYB} offen sc1")
e("L_nopub2:")
stamp(10)
e(f"s_lshl_b32 s{sT0}, s{sS}, 2")
e(f"s_cmp_lg_u32 s{sT0}, s{sH}")
e("s_cbranch_scc1 L_end")
e(f"s_sub_u32 s{sT2}, s{sW}, 1")
e(f"s_cmp_ge_u32 s{sT2}, 8")
e("s_cbranch_scc1 L_end")
e(f"s_mov_b32 s{sSPIN}, 0")
e(f"v_mov_b32 v{vT}, 0x01010101")
e("L_ready:")
e(f"v_cmp_ne_u32 vcc, v{vT}, v{vCNT}")
spin_check("L_ready_ok")
e("s_nop 1")
e("s_cbranch_vccz L_ready_ok")
e(f"buffer_load_dword v{vCNT}, v{vDA}, {srd(sDBG)}, 0 offen sc1")
e("s_waitcnt vmcnt(0)")
e("s_branch L_ready")
e("L_ready_ok:")
e(f"v_lshrrev_b32 v{vT}, 2, v{vLANE}")
e(f"v_and_b32 v{vT+1}, 3, v{vLANE}")
e(f"v_lshlrev_b32 v{vYA}, 10, v{vT}")
e(f"v_lshl_add_u32 v{vYA}, v{vT+1}, 4, v{vYA}")
e(f"s_lshl_b32 s{sT0}, s{sT2}, 6")
e(f"s_add_u32 s{sT0}, s{sT0}, s{sYB}")
e(f"s_add_u32 s{sT1}, s{sT0}, 16384")
poll_loop("poll2", [f"buffer_load_dwordx4 {vr(vO1,4)}, v{vYA}, {srd(sWS)}, s{sT0} offen sc1",
                    f"buffer_load_dwordx4 {vr(vO1+4,4)}, v{vYA}, {srd(sWS)}, s{sT1} offen sc1"], range(vO1, vO1+8), 0)
for c in range(4):
    e(f"v_add_f32 v{vA+c}, v{vO1+c}, v{vO1+4+c}")
e("s_nop 1")
for r in (4, 8):
    for c in range(4):
        e(f"v_add_f32_dpp v{vA+c}, v{vA+c}, v{vA+c} row_ror:{r} row_mask:0xf bank_mask:0xf")
    e("s_nop 1")
for c in range(4):
    e(f"v_mov_b32 v{vA+4+c}, v{vA+c}")
e("s_nop 1")
for c in range(4):
    e(f"v_permlane32_swap_b32 v{vA+c}, v{vA+4+c}")
for c in range(4):
    e(f"v_add_f32 v{vA+c}, v{vA+c}, v{vA+4+c}")
for c in range(4):
    e(f"v_mov_b32 v{vA+4+c}, v{vA+c}")
e("s_nop 1")
for c in range(4):
    e(f"v_permlane16_swap_b32 v{vA+c}, v{vA+4+c}")
for c in range(4):
    e(f"v_add_f32 v{vA+c}, v{vA+c}, v{vA+4+c}")
e(f"v_cvt_pk_bf16_f32 v{vA}, v{vA}, v{vA+1}")
e(f"v_cvt_pk_bf16_f32 v{vA+1}, v{vA+2}, v{vA+3}")
e(f"s_lshl_b32 s{sT0}, s{sS}, 8")
e(f"s_lshl_b32 s{sT1}, s{sT2}, 5")
e(f"s_add_u32 s{sT0}, s{sT0}, s{sT1}")
e(f"v_lshlrev_b32 v{vT+1}, 3, v{vT+1}")
e("s_mov_b64 exec, 15")
e(f"buffer_store_dwordx2 {vr(vA,2)}, v{vT+1}, {srd(sOUT)}, s{sT0} offen")
stamp(11)
e("L_end:")
if STAMPS:
    e("s_cmp_ge_u32 s2, 256")
    e("s_cbranch_scc1 L_end2")
    e("s_waitcnt lgkmcnt(0)")
    e("s_mov_b64 exec, 1")
    e(f"s_lshl_b32 s{sT0}, s2, 4")
    e(f"s_add_u32 s{sT0}, s{sT0}, s{sW}")
    e(f"s_lshl_b32 s{sT0}, s{sT0}, 7")
    e(f"s_add_u32 s{sT0}, s{sT0}, {4<<20}")
    for i in range(NSTAMP):
        e(f"v_mov_b32 v{vK+i}, s{72+2*i}")
    for i in range(0, NSTAMP, 4):
        e(f"buffer_store_dwordx4 {vr(vK+i,4)}, v{vZERO}, {srd(sWS)}, s{sT0} offen offset:{i*4}")
    e("L_end2:")
e("s_endpgm")

path = sys.argv[1] if len(sys.argv) > 1 else "standalone__sliding_block_cached__decode.s"
open(path, "w").write(HEADER + "\n".join(out) + "\n" + FOOTER)
print("wrote", path, len(out), "lines")
```
